```python
import torch

def _softmax(x, axis=-1):
    return torch.softmax(x, dim=axis)
def _gelu(x):
    return torch.nn.functional.gelu(x, approximate="tanh")
def _silu(x):
    return torch.nn.functional.silu(x)
def _sigmoid(x):
    return torch.sigmoid(x)
def _layernorm(x, axis=-1, eps=1e-5):
    m = x.mean(dim=axis, keepdim=True)
    v = x.var(dim=axis, keepdim=True, unbiased=False)
    return (x - m) / torch.sqrt(v + eps)
def _scatter_add(tgt, idx, src, axis=0):
    return tgt.clone().index_add_(axis, idx, src)
def _segment_sum(src, seg, n):
    out = torch.zeros((n,) + src.shape[1:], dtype=src.dtype)
    return out.index_add_(0, seg, src)
def _pad(x, pw):
    flat = tuple(v for pair in reversed(pw) for v in pair)
    return torch.nn.functional.pad(x, flat)

kernel_name = 'standalone__gqa_softmax__near_ridge'

def setup_inputs():

    _w = (lambda a: (lambda t: t.to(torch.bfloat16) if t.is_floating_point() else t)(torch.as_tensor(a)))
    B, Hq, Hkv, Sq, Sk, D = 8, 32, 4, 48, 2048, 128
    return {
        "q": _w((lambda *s: torch.randn(*s, dtype=torch.bfloat16) * 0.8)(B, Hq, Sq, D)),
        "k": _w((lambda *s: torch.randn(*s, dtype=torch.bfloat16) * 0.8)(B, Hkv, Sk, D)),
        "v": _w((lambda *s: torch.randn(*s, dtype=torch.bfloat16) * 0.05)(B, Hkv, Sk, D)),
    }

def reference(q, k, v):
    B, Hq, Sq, D = q.shape
    Hkv = k.shape[1]
    rep = Hq // Hkv
    k = (lambda x, n, axis: torch.repeat_interleave(x, n, dim=axis))(k, rep, axis=1)
    v = (lambda x, n, axis: torch.repeat_interleave(x, n, dim=axis))(v, rep, axis=1)
    scale = D ** -0.5
    scores = torch.einsum("bhqd,bhkd->bhqk", q, k) * scale
    p = _softmax(scores, axis=-1)
    return torch.einsum("bhqk,bhkd->bhqd", p, v)
```

```python
import sys
out = []
def e(s): out.append("    " + s)
def lab(s): out.append(s + ":")

HDR = open('standalone__gqa_softmax__near_ridge.s.ref').read().split('\n')
hdr_comments = [l for l in HDR if l.startswith(';') and '@launch' not in l]

LDS_BYTES = 131072 + 4096
NAME = "standalone__gqa_softmax__near_ridge_kernel"

V_KOFF, V_VE, V_VO, V_TR = 1, 2, 3, 4
V_M = 5
V_L = 8
V_AL = 11
V_MC = 14
V_T = 17
VQ = 20
VK = 68
VS = 100
VV = 124
VO = 156
def q(qt, s): return VQ + (qt*4+s)*4
def k(kt, s): return VK + (kt*4+s)*4
def sreg(qt, kt): return VS + qt*8 + kt*4
def vfr(dt): return VV + dt*4
def o(dt, qt): return VO + (dt*3+qt)*4
def r4(b): return f"v[{b}:{b+3}]"
def r2(b): return f"v[{b}:{b+1}]"

out += hdr_comments
out.append(f"; @launch grid=(256,1,1) block=(512,1,1) lds={LDS_BYTES}")
out.append('.amdgcn_target "amdgcn-amd-amdhsa--gfx950"')
out.append('.text')
out.append(f'.globl {NAME}')
out.append('.p2align 8')
out.append(f'.type {NAME},@function')
lab(NAME)
e("s_cmp_ge_u32 s2, 256")
e("s_cbranch_scc1 L_done")
e("s_load_dwordx4 s[28:31], s[0:1], 0")
e("s_load_dwordx4 s[32:35], s[0:1], 16")
e("v_lshrrev_b32 v1, 6, v0")
e("v_and_b32 v0, 63, v0")
e("s_nop 0")
e("v_readfirstlane_b32 s27, v1")
e("s_and_b32 s3, s2, 7")
e("s_lshl_b32 s3, s3, 2")
e("s_lshr_b32 s36, s2, 6")
e("s_add_u32 s3, s3, s36")
e("s_lshr_b32 s36, s2, 3")
e("s_and_b32 s36, s36, 7")
e("s_lshl_b32 s37, s3, 3")
e("s_add_u32 s37, s37, s36")
e("s_mul_i32 s38, s37, 12288")
e("s_lshl_b32 s39, s3, 19")
e("s_add_u32 s40, s27, 1")
e("s_lshl_b32 s40, s40, 16")
e("s_waitcnt lgkmcnt(0)")
e("s_add_u32 s4, s28, s38"); e("s_addc_u32 s5, s29, 0"); e("s_mov_b32 s6, 12288"); e("s_mov_b32 s7, 0x00020000")
e("s_add_u32 s8, s30, s39"); e("s_addc_u32 s9, s31, 0"); e("s_mov_b32 s10, s40"); e("s_mov_b32 s11, 0x00020000")
e("s_add_u32 s12, s32, s39"); e("s_addc_u32 s13, s33, 0"); e("s_mov_b32 s14, s40"); e("s_mov_b32 s15, 0x00020000")
e("s_add_u32 s16, s34, s38"); e("s_addc_u32 s17, s35, 0"); e("s_mov_b32 s18, 12288"); e("s_mov_b32 s19, 0x00020000")
e("s_mov_b32 s20, 0x3e0293ee")
e("v_and_b32 v17, 15, v0")
e("v_lshrrev_b32 v18, 4, v0")
e("v_lshlrev_b32 v1, 8, v17")
e("v_lshl_add_u32 v1, v18, 4, v1")
e("v_lshlrev_b32 v19, 1, v18")
e("v_xor_b32 v2, v17, v19")
e("v_lshlrev_b32 v2, 4, v2")
e("v_lshl_add_u32 v2, v18, 8, v2")
e("v_add_u32 v19, 8, v19")
e("v_xor_b32 v3, v17, v19")
e("v_lshlrev_b32 v3, 4, v3")
e("v_lshl_add_u32 v3, v18, 8, v3")
e("v_lshrrev_b32 v17, 2, v0")
e("v_and_b32 v18, 7, v17")
e("v_lshlrev_b32 v18, 5, v18")
e("v_lshl_add_u32 v4, v17, 8, v18")
e("v_and_b32 v17, 3, v0")
e("v_lshl_add_u32 v4, v17, 3, v4")
e("s_lshl_b32 s41, s27, 14")
e("v_add_u32 v4, s41, v4")
for qt in range(3):
    e(f"v_add_u32 v17, {qt*4096}, v1")
    for s in range(4):
        e(f"buffer_load_dwordx4 {r4(q(qt,s))}, v17, s[4:7], 0 offen offset:{s*64}")
for qt in range(3):
    e(f"v_mov_b32 v{V_M+qt}, 0xff800000")
    e(f"v_mov_b32 v{V_L+qt}, 0")
for i in range(96):
    e(f"v_mov_b32 v{VO+i}, 0")
e("s_lshl_b32 s21, s27, 16")
e("s_add_u32 s22, s21, 4096")
e("s_mov_b32 s23, s21")
e("s_add_u32 s24, s23, 4096")
e("s_mov_b32 s25, s41")

def issue_k():
    for kt in range(2):
        for s in range(4):
            e(f"buffer_load_dwordx4 {r4(k(kt,s))}, v{V_KOFF}, s[8:11], s{21+kt} offen offset:{s*64}")
    e("s_add_u32 s21, s21, 8192"); e("s_add_u32 s22, s22, 8192")
def issue_v():
    for h in range(2):
        e(f"s_add_u32 m0, s25, {h*4096}")
        e("s_nop 0")
        for i in range(4):
            e(f"buffer_load_dwordx4 v{V_VE if i%2==0 else V_VO}, s[12:15], s{23+h} offen offset:{i*1024} lds")
    e("s_add_u32 s23, s23, 8192"); e("s_add_u32 s24, s24, 8192")
    e("s_xor_b32 s25, s25, 8192")
issue_v(); issue_k(); issue_v()
e("s_mov_b32 s26, 0")
e("s_mov_b32 s42, 0")
lab("L_loop")
e("s_waitcnt vmcnt(8)")
for s in range(4):
    for kt in range(2):
        for qt in range(3):
            c = "0" if s == 0 else r4(sreg(qt,kt))
            e(f"v_mfma_f32_16x16x32_bf16 {r4(sreg(qt,kt))}, {r4(k(kt,s))}, {r4(q(qt,s))}, {c}")
issue_k()
e(f"v_add_u32 v17, s42, v{V_TR}")
for dt in range(8):
    if dt == 0:
        areg = 17
    else:
        e(f"v_xor_b32 v18, {dt<<5}, v17"); areg = 18
    e(f"ds_read_b64_tr_b16 {r2(vfr(dt))}, v{areg}")
    e(f"ds_read_b64_tr_b16 {r2(vfr(dt)+2)}, v{areg} offset:4096")
e("s_nop 4")
for qt in range(3):
    b = sreg(qt,0)
    e(f"v_max3_f32 v17, v{b}, v{b+1}, v{b+2}")
    e(f"v_max3_f32 v17, v17, v{b+3}, v{b+4}")
    e(f"v_max3_f32 v17, v17, v{b+5}, v{b+6}")
    e(f"v_max3_f32 v17, v17, v{b+7}, v{V_M+qt}")
    e(f"v_mov_b32 v18, v17")
    e("s_nop 1")
    e("v_permlane32_swap_b32 v17, v18")
    e("s_nop 1")
    e("v_max_f32 v17, v17, v18")
    e(f"v_mov_b32 v18, v17")
    e("s_nop 1")
    e("v_permlane16_swap_b32 v17, v18")
    e("s_nop 1")
    e("v_max_f32 v17, v17, v18")
    e(f"v_mul_f32 v{V_MC+qt}, s20, v17")
    e(f"v_fma_f32 v{V_AL+qt}, v{V_M+qt}, s20, -v{V_MC+qt}")
    e(f"v_exp_f32 v{V_AL+qt}, v{V_AL+qt}")
    e(f"v_mov_b32 v{V_M+qt}, v17")
    for j in range(8):
        e(f"v_fma_f32 v{b+j}, v{b+j}, s20, -v{V_MC+qt}")
    for j in range(8):
        e(f"v_exp_f32 v{b+j}, v{b+j}")
    e(f"v_mul_f32 v{V_L+qt}, v{V_L+qt}, v{V_AL+qt}")
    for j in range(8):
        e(f"v_add_f32 v{V_L+qt}, v{V_L+qt}, v{b+j}")
    for j in range(4):
        e(f"v_cvt_pk_bf16_f32 v{b+j}, v{b+2*j}, v{b+2*j+1}")
    for dt in range(8):
        for r in range(4):
            e(f"v_mul_f32 v{o(dt,qt)+r}, v{o(dt,qt)+r}, v{V_AL+qt}")
e("s_waitcnt lgkmcnt(0)")
issue_v()
for dt in range(8):
    for qt in range(3):
        e(f"v_mfma_f32_16x16x32_bf16 {r4(o(dt,qt))}, {r4(vfr(dt))}, {r4(sreg(qt,0))}, {r4(o(dt,qt))}")
e("s_xor_b32 s42, s42, 8192")
e("s_add_u32 s26, s26, 1")
e("s_cmp_lt_u32 s26, 8")
e("s_cbranch_scc1 L_loop")
e("s_waitcnt vmcnt(0) lgkmcnt(0)")
e("s_nop 7")
for qt in range(3):
    e(f"v_mov_b32 v18, v{V_L+qt}")
    e("s_nop 1")
    e(f"v_permlane32_swap_b32 v{V_L+qt}, v18")
    e("s_nop 1")
    e(f"v_add_f32 v{V_L+qt}, v{V_L+qt}, v18")
    e(f"v_mov_b32 v18, v{V_L+qt}")
    e("s_nop 1")
    e(f"v_permlane16_swap_b32 v{V_L+qt}, v18")
    e("s_nop 1")
    e(f"v_add_f32 v{V_L+qt}, v{V_L+qt}, v18")
e("v_and_b32 v17, 15, v0")
e("v_lshlrev_b32 v17, 2, v17")
e("s_mul_i32 s43, s27, 192")
e("s_add_u32 s43, s43, 131072")
e("v_add_u32 v18, s43, v17")
for qt in range(3):
    e(f"ds_write_b32 v18, v{V_M+qt} offset:{qt*64}")
e("s_waitcnt lgkmcnt(0)")
e("s_barrier")
e("v_add_u32 v19, 131072, v17")
for qt in range(3):
    for w in range(8):
        e(f"ds_read_b32 v{VS+qt*8+w}, v19 offset:{w*192+qt*64}")
e("s_waitcnt lgkmcnt(0)")
for qt in range(3):
    b = VS+qt*8
    e(f"v_max3_f32 v17, v{b}, v{b+1}, v{b+2}")
    e(f"v_max3_f32 v17, v17, v{b+3}, v{b+4}")
    e(f"v_max3_f32 v17, v17, v{b+5}, v{b+6}")
    e(f"v_max_f32 v17, v17, v{b+7}")
    e(f"v_mul_f32 v17, s20, v17")
    e(f"v_fma_f32 v{V_AL+qt}, v{V_M+qt}, s20, -v17")
    e(f"v_exp_f32 v{V_AL+qt}, v{V_AL+qt}")
    e("s_nop 0")
    e(f"v_mul_f32 v{V_L+qt}, v{V_L+qt}, v{V_AL+qt}")
    for dt in range(8):
        for r in range(4):
            e(f"v_mul_f32 v{o(dt,qt)+r}, v{o(dt,qt)+r}, v{V_AL+qt}")
for qt in range(3):
    e(f"ds_write_b32 v18, v{V_L+qt} offset:{2048+qt*64}")
e("v_lshlrev_b32 v17, 4, v0")
e("s_lshl_b32 s43, s27, 14")
e("v_add_u32 v18, s43, v17")
for qt in range(2):
    for dt in range(8):
        e(f"ds_write_b128 v18, {r4(o(dt,qt))} offset:{(qt*8+dt)*1024}")
e("s_waitcnt lgkmcnt(0)")
e("s_barrier")
for qt in range(3):
    for w in range(8):
        e(f"ds_read_b32 v{VS+qt*8+w}, v19 offset:{2048+w*192+qt*64}")
e("s_lshl_b32 s43, s27, 10")
e("v_add_u32 v18, s43, v17")
e("v_add_u32 v1, 65536, v18")
for qt in range(2):
    for w in range(8):
        e(f"ds_read_b128 {r4(o(w,qt))}, v{18 if w<4 else 1} offset:{(w%4)*16384+qt*8192}")
e("s_waitcnt lgkmcnt(0)")
for qt in range(3):
    b = VS+qt*8
    for w in range(1,8):
        e(f"v_add_f32 v{b}, v{b}, v{b+w}")
    e(f"v_rcp_f32 v{V_AL+qt}, v{b}")
for qt in range(2):
    for w in range(1,8):
        for r in range(4):
            e(f"v_add_f32 v{o(0,qt)+r}, v{o(0,qt)+r}, v{o(w,qt)+r}")
e("s_barrier")
e("s_lshl_b32 s43, s27, 13")
e("v_add_u32 v18, s43, v17")
for dt in range(8):
    e(f"ds_write_b128 v18, {r4(o(dt,2))} offset:{dt*1024}")
e("s_waitcnt lgkmcnt(0)")
e("s_barrier")
e("s_lshl_b32 s43, s27, 10")
e("v_add_u32 v18, s43, v17")
for w in range(8):
    e(f"ds_read_b128 {r4(o(w,2))}, v18 offset:{w*8192}")
e("s_waitcnt lgkmcnt(0)")
for w in range(1,8):
    for r in range(4):
        e(f"v_add_f32 v{o(0,2)+r}, v{o(0,2)+r}, v{o(w,2)+r}")
e("v_and_b32 v17, 15, v0")
e("v_lshrrev_b32 v18, 4, v0")
e("v_lshlrev_b32 v17, 8, v17")
e("v_lshl_add_u32 v17, v18, 3, v17")
e("s_lshl_b32 s43, s27, 5")
e("v_add_u32 v17, s43, v17")
for qt in range(3):
    b = o(0,qt)
    for r in range(4):
        e(f"v_mul_f32 v{b+r}, v{b+r}, v{V_AL+qt}")
    e(f"v_cvt_pk_bf16_f32 v{b}, v{b}, v{b+1}")
    e(f"v_cvt_pk_bf16_f32 v{b+1}, v{b+2}, v{b+3}")
    e(f"v_add_u32 v18, {qt*4096}, v17")
    e(f"buffer_store_dwordx2 {r2(b)}, v18, s[16:19], 0 offen")
lab("L_done")
e("s_endpgm")
out.append('.section .rodata,"a"')
out.append('.p2align 6')
out.append(f'.amdhsa_kernel {NAME}')
out.append('  .amdhsa_next_free_vgpr 256')
out.append('  .amdhsa_next_free_sgpr 64')
out.append('  .amdhsa_accum_offset 256')
out.append('  .amdhsa_group_segment_fixed_size 0')
out.append('  .amdhsa_kernarg_size 48')
out.append('  .amdhsa_user_sgpr_count 2')
out.append('  .amdhsa_user_sgpr_kernarg_segment_ptr 1')
out.append('  .amdhsa_system_sgpr_workgroup_id_x 1')
out.append('.end_amdhsa_kernel')
open(sys.argv[1] if len(sys.argv)>1 else 'standalone__gqa_softmax__near_ridge.s','w').write('\n'.join(out)+'\n')
```

```python
import sys
out = []
def e(s): out.append("    " + s)
def lab(s): out.append(s + ":")

HDR = open('standalone__gqa_softmax__near_ridge.s.ref').read().split('\n')
hdr_comments = [l for l in HDR if l.startswith(';') and '@launch' not in l]

LDS_BYTES = 131072 + 4096
NAME = "standalone__gqa_softmax__near_ridge_kernel"

V_KOFF, V_VE, V_VO, V_TR = 1, 2, 3, 4
V_M = 5
V_L = 8
V_AL = 11
V_MC = 14
V_T = 17
VQ = 20
VK = 68
VS = 100
VV = 124
VO = 156
def q(qt, s): return VQ + (qt*4+s)*4
def k(kt, s): return VK + (kt*4+s)*4
def sreg(qt, kt): return VS + qt*8 + kt*4
def vfr(dt): return VV + dt*4
def o(dt, qt): return VO + (dt*3+qt)*4
def r4(b): return f"v[{b}:{b+3}]"
def r2(b): return f"v[{b}:{b+1}]"
import os
INSTR = os.environ.get('INSTR','0')=='1'
stamp_n=[0]
def stamp():
    if not INSTR: return
    e("s_memtime s[44:45]")
    e("s_waitcnt lgkmcnt(0)")
    e(f"v_writelane_b32 v253, s44, {stamp_n[0]}")
    stamp_n[0]+=1


out += hdr_comments
out.append(f"; @launch grid=(256,1,1) block=(512,1,1) lds={LDS_BYTES}")
out.append('.amdgcn_target "amdgcn-amd-amdhsa--gfx950"')
out.append('.text')
out.append(f'.globl {NAME}')
out.append('.p2align 8')
out.append(f'.type {NAME},@function')
lab(NAME)
e("s_cmp_ge_u32 s2, 256")
e("s_cbranch_scc1 L_done")
e("v_mov_b32 v253, 0")
stamp()
e("s_load_dwordx4 s[28:31], s[0:1], 0")
e("s_load_dwordx4 s[32:35], s[0:1], 16")
e("v_lshrrev_b32 v1, 6, v0")
e("v_and_b32 v0, 63, v0")
e("s_nop 0")
e("v_readfirstlane_b32 s27, v1")
e("s_and_b32 s3, s2, 7")
e("s_lshl_b32 s3, s3, 2")
e("s_lshr_b32 s36, s2, 6")
e("s_add_u32 s3, s3, s36")
e("s_lshr_b32 s36, s2, 3")
e("s_and_b32 s36, s36, 7")
e("s_lshl_b32 s37, s3, 3")
e("s_add_u32 s37, s37, s36")
e("s_mul_i32 s38, s37, 12288")
e("s_lshl_b32 s39, s3, 19")
e("s_add_u32 s40, s27, 1")
e("s_lshl_b32 s40, s40, 16")
e("s_waitcnt lgkmcnt(0)")
e("s_add_u32 s4, s28, s38"); e("s_addc_u32 s5, s29, 0"); e("s_mov_b32 s6, 12288"); e("s_mov_b32 s7, 0x00020000")
e("s_add_u32 s8, s30, s39"); e("s_addc_u32 s9, s31, 0"); e("s_mov_b32 s10, s40"); e("s_mov_b32 s11, 0x00020000")
e("s_add_u32 s12, s32, s39"); e("s_addc_u32 s13, s33, 0"); e("s_mov_b32 s14, s40"); e("s_mov_b32 s15, 0x00020000")
e("s_add_u32 s16, s34, s38"); e("s_addc_u32 s17, s35, 0"); e("s_mov_b32 s18, 12288"); e("s_mov_b32 s19, 0x00020000")
e("s_mov_b32 s20, 0x3e0293ee")
e("v_and_b32 v17, 15, v0")
e("v_lshrrev_b32 v18, 4, v0")
e("v_lshlrev_b32 v1, 8, v17")
e("v_lshl_add_u32 v1, v18, 4, v1")
e("v_lshlrev_b32 v19, 1, v18")
e("v_xor_b32 v2, v17, v19")
e("v_lshlrev_b32 v2, 4, v2")
e("v_lshl_add_u32 v2, v18, 8, v2")
e("v_add_u32 v19, 8, v19")
e("v_xor_b32 v3, v17, v19")
e("v_lshlrev_b32 v3, 4, v3")
e("v_lshl_add_u32 v3, v18, 8, v3")
e("v_lshrrev_b32 v17, 2, v0")
e("v_and_b32 v18, 7, v17")
e("v_lshlrev_b32 v18, 5, v18")
e("v_lshl_add_u32 v4, v17, 8, v18")
e("v_and_b32 v17, 3, v0")
e("v_lshl_add_u32 v4, v17, 3, v4")
e("s_lshl_b32 s41, s27, 14")
e("v_add_u32 v4, s41, v4")
for qt in range(3):
    e(f"v_add_u32 v17, {qt*4096}, v1")
    for s in range(4):
        e(f"buffer_load_dwordx4 {r4(q(qt,s))}, v17, s[4:7], 0 offen offset:{s*64}")
for qt in range(3):
    e(f"v_mov_b32 v{V_M+qt}, 0xff800000")
    e(f"v_mov_b32 v{V_L+qt}, 0")
for i in range(96):
    e(f"v_mov_b32 v{VO+i}, 0")
e("s_lshl_b32 s21, s27, 16")
e("s_add_u32 s22, s21, 4096")
e("s_mov_b32 s23, s21")
e("s_add_u32 s24, s23, 4096")
e("s_mov_b32 s25, s41")

def issue_k():
    for kt in range(2):
        for s in range(4):
            e(f"buffer_load_dwordx4 {r4(k(kt,s))}, v{V_KOFF}, s[8:11], s{21+kt} offen offset:{s*64}")
    e("s_add_u32 s21, s21, 8192"); e("s_add_u32 s22, s22, 8192")
def issue_v():
    for h in range(2):
        e(f"s_add_u32 m0, s25, {h*4096}")
        e("s_nop 0")
        for i in range(4):
            e(f"buffer_load_dwordx4 v{V_VE if i%2==0 else V_VO}, s[12:15], s{23+h} offen offset:{i*1024} lds")
    e("s_add_u32 s23, s23, 8192"); e("s_add_u32 s24, s24, 8192")
    e("s_xor_b32 s25, s25, 8192")
issue_v(); issue_k(); issue_v()
stamp()
e("s_mov_b32 s26, 0")
e("s_mov_b32 s42, 0")
lab("L_loop")
e("s_waitcnt vmcnt(8)")
for s in range(4):
    for kt in range(2):
        for qt in range(3):
            c = "0" if s == 0 else r4(sreg(qt,kt))
            e(f"v_mfma_f32_16x16x32_bf16 {r4(sreg(qt,kt))}, {r4(k(kt,s))}, {r4(q(qt,s))}, {c}")
issue_k()
e(f"v_add_u32 v17, s42, v{V_TR}")
for dt in range(8):
    if dt == 0:
        areg = 17
    else:
        e(f"v_xor_b32 v18, {dt<<5}, v17"); areg = 18
    e(f"ds_read_b64_tr_b16 {r2(vfr(dt))}, v{areg}")
    e(f"ds_read_b64_tr_b16 {r2(vfr(dt)+2)}, v{areg} offset:4096")
e("s_nop 4")
for qt in range(3):
    b = sreg(qt,0)
    e(f"v_max3_f32 v17, v{b}, v{b+1}, v{b+2}")
    e(f"v_max3_f32 v17, v17, v{b+3}, v{b+4}")
    e(f"v_max3_f32 v17, v17, v{b+5}, v{b+6}")
    e(f"v_max3_f32 v17, v17, v{b+7}, v{V_M+qt}")
    e(f"v_mov_b32 v18, v17")
    e("s_nop 1")
    e("v_permlane32_swap_b32 v17, v18")
    e("s_nop 1")
    e("v_max_f32 v17, v17, v18")
    e(f"v_mov_b32 v18, v17")
    e("s_nop 1")
    e("v_permlane16_swap_b32 v17, v18")
    e("s_nop 1")
    e("v_max_f32 v17, v17, v18")
    e(f"v_mul_f32 v{V_MC+qt}, s20, v17")
    e(f"v_fma_f32 v{V_AL+qt}, v{V_M+qt}, s20, -v{V_MC+qt}")
    e(f"v_exp_f32 v{V_AL+qt}, v{V_AL+qt}")
    e(f"v_mov_b32 v{V_M+qt}, v17")
    for j in range(8):
        e(f"v_fma_f32 v{b+j}, v{b+j}, s20, -v{V_MC+qt}")
    for j in range(8):
        e(f"v_exp_f32 v{b+j}, v{b+j}")
    e(f"v_mul_f32 v{V_L+qt}, v{V_L+qt}, v{V_AL+qt}")
    for j in range(8):
        e(f"v_add_f32 v{V_L+qt}, v{V_L+qt}, v{b+j}")
    for j in range(4):
        e(f"v_cvt_pk_bf16_f32 v{b+j}, v{b+2*j}, v{b+2*j+1}")
    for dt in range(8):
        for r in range(4):
            e(f"v_mul_f32 v{o(dt,qt)+r}, v{o(dt,qt)+r}, v{V_AL+qt}")
e("s_waitcnt lgkmcnt(0)")
issue_v()
for dt in range(8):
    for qt in range(3):
        e(f"v_mfma_f32_16x16x32_bf16 {r4(o(dt,qt))}, {r4(vfr(dt))}, {r4(sreg(qt,0))}, {r4(o(dt,qt))}")
if INSTR:
    e("s_memtime s[44:45]")
    e("s_waitcnt lgkmcnt(0)")
    e("s_add_u32 s46, s26, 2")
    e("s_mov_b32 m0, s46")
    e("s_nop 4")
    e("v_writelane_b32 v253, s44, m0")
    stamp_n[0]=10
e("s_xor_b32 s42, s42, 8192")
e("s_add_u32 s26, s26, 1")
e("s_cmp_lt_u32 s26, 8")
e("s_cbranch_scc1 L_loop")
e("s_waitcnt vmcnt(0) lgkmcnt(0)")
e("s_nop 7")
for qt in range(3):
    e(f"v_mov_b32 v18, v{V_L+qt}")
    e("s_nop 1")
    e(f"v_permlane32_swap_b32 v{V_L+qt}, v18")
    e("s_nop 1")
    e(f"v_add_f32 v{V_L+qt}, v{V_L+qt}, v18")
    e(f"v_mov_b32 v18, v{V_L+qt}")
    e("s_nop 1")
    e(f"v_permlane16_swap_b32 v{V_L+qt}, v18")
    e("s_nop 1")
    e(f"v_add_f32 v{V_L+qt}, v{V_L+qt}, v18")
e("v_and_b32 v17, 15, v0")
e("v_lshlrev_b32 v17, 2, v17")
e("s_mul_i32 s43, s27, 192")
e("s_add_u32 s43, s43, 131072")
e("v_add_u32 v18, s43, v17")
for qt in range(3):
    e(f"ds_write_b32 v18, v{V_M+qt} offset:{qt*64}")
e("s_waitcnt lgkmcnt(0)")
e("s_barrier")
stamp()
e("v_add_u32 v19, 131072, v17")
for qt in range(3):
    for w in range(8):
        e(f"ds_read_b32 v{VS+qt*8+w}, v19 offset:{w*192+qt*64}")
e("s_waitcnt lgkmcnt(0)")
for qt in range(3):
    b = VS+qt*8
    e(f"v_max3_f32 v17, v{b}, v{b+1}, v{b+2}")
    e(f"v_max3_f32 v17, v17, v{b+3}, v{b+4}")
    e(f"v_max3_f32 v17, v17, v{b+5}, v{b+6}")
    e(f"v_max_f32 v17, v17, v{b+7}")
    e(f"v_mul_f32 v17, s20, v17")
    e(f"v_fma_f32 v{V_AL+qt}, v{V_M+qt}, s20, -v17")
    e(f"v_exp_f32 v{V_AL+qt}, v{V_AL+qt}")
    e("s_nop 0")
    e(f"v_mul_f32 v{V_L+qt}, v{V_L+qt}, v{V_AL+qt}")
    for dt in range(8):
        for r in range(4):
            e(f"v_mul_f32 v{o(dt,qt)+r}, v{o(dt,qt)+r}, v{V_AL+qt}")
for qt in range(3):
    e(f"ds_write_b32 v18, v{V_L+qt} offset:{2048+qt*64}")
e("v_lshlrev_b32 v17, 4, v0")
e("s_lshl_b32 s43, s27, 14")
e("v_add_u32 v18, s43, v17")
for qt in range(2):
    for dt in range(8):
        e(f"ds_write_b128 v18, {r4(o(dt,qt))} offset:{(qt*8+dt)*1024}")
e("s_waitcnt lgkmcnt(0)")
e("s_barrier")
for qt in range(3):
    for w in range(8):
        e(f"ds_read_b32 v{VS+qt*8+w}, v19 offset:{2048+w*192+qt*64}")
e("s_lshl_b32 s43, s27, 10")
e("v_add_u32 v18, s43, v17")
e("v_add_u32 v1, 65536, v18")
for qt in range(2):
    for w in range(8):
        e(f"ds_read_b128 {r4(o(w,qt))}, v{18 if w<4 else 1} offset:{(w%4)*16384+qt*8192}")
e("s_waitcnt lgkmcnt(0)")
for qt in range(3):
    b = VS+qt*8
    for w in range(1,8):
        e(f"v_add_f32 v{b}, v{b}, v{b+w}")
    e(f"v_rcp_f32 v{V_AL+qt}, v{b}")
for qt in range(2):
    for w in range(1,8):
        for r in range(4):
            e(f"v_add_f32 v{o(0,qt)+r}, v{o(0,qt)+r}, v{o(w,qt)+r}")
e("s_barrier")
e("s_lshl_b32 s43, s27, 13")
e("v_add_u32 v18, s43, v17")
for dt in range(8):
    e(f"ds_write_b128 v18, {r4(o(dt,2))} offset:{dt*1024}")
e("s_waitcnt lgkmcnt(0)")
e("s_barrier")
e("s_lshl_b32 s43, s27, 10")
e("v_add_u32 v18, s43, v17")
for w in range(8):
    e(f"ds_read_b128 {r4(o(w,2))}, v18 offset:{w*8192}")
e("s_waitcnt lgkmcnt(0)")
for w in range(1,8):
    for r in range(4):
        e(f"v_add_f32 v{o(0,2)+r}, v{o(0,2)+r}, v{o(w,2)+r}")
e("v_and_b32 v17, 15, v0")
e("v_lshrrev_b32 v18, 4, v0")
e("v_lshlrev_b32 v17, 8, v17")
e("v_lshl_add_u32 v17, v18, 3, v17")
e("s_lshl_b32 s43, s27, 5")
e("v_add_u32 v17, s43, v17")
for qt in range(3):
    b = o(0,qt)
    for r in range(4):
        e(f"v_mul_f32 v{b+r}, v{b+r}, v{V_AL+qt}")
    e(f"v_cvt_pk_bf16_f32 v{b}, v{b}, v{b+1}")
    e(f"v_cvt_pk_bf16_f32 v{b+1}, v{b+2}, v{b+3}")
    e(f"v_add_u32 v18, {qt*4096}, v17")
    e(f"buffer_store_dwordx2 {r2(b)}, v18, s[16:19], 0 offen")
stamp()
if INSTR:
    e("s_cmp_lg_u32 s2, 0")
    e("s_cbranch_scc1 L_done")
    e("s_cmp_lg_u32 s27, 0")
    e("s_cbranch_scc1 L_done")
    e("s_load_dwordx2 s[48:49], s[0:1], 32")
    e("s_waitcnt lgkmcnt(0)")
    e("s_mov_b32 s50, 64"); e("s_mov_b32 s51, 0x00020000")
    e("v_lshlrev_b32 v17, 2, v0")
    e("buffer_store_dword v253, v17, s[48:51], 0 offen")
lab("L_done")
e("s_endpgm")
out.append('.section .rodata,"a"')
out.append('.p2align 6')
out.append(f'.amdhsa_kernel {NAME}')
out.append('  .amdhsa_next_free_vgpr 256')
out.append('  .amdhsa_next_free_sgpr 64')
out.append('  .amdhsa_accum_offset 256')
out.append('  .amdhsa_group_segment_fixed_size 0')
out.append('  .amdhsa_kernarg_size 48')
out.append('  .amdhsa_user_sgpr_count 2')
out.append('  .amdhsa_user_sgpr_kernarg_segment_ptr 1')
out.append('  .amdhsa_system_sgpr_workgroup_id_x 1')
out.append('.end_amdhsa_kernel')
open(sys.argv[1] if len(sys.argv)>1 else 'standalone__gqa_softmax__near_ridge.s','w').write('\n'.join(out)+'\n')
```

```python
import sys
out = []
def e(s): out.append("    " + s)
def lab(s): out.append(s + ":")

HDR = open('standalone__gqa_softmax__near_ridge.s.ref').read().split('\n')
hdr_comments = [l for l in HDR if l.startswith(';') and '@launch' not in l]

LDS_BYTES = 131072 + 4096
NAME = "standalone__gqa_softmax__near_ridge_kernel"

V_KOFF, V_VE, V_VO, V_TR = 1, 2, 3, 4
V_M = 5
V_L = 8
V_AL = 11
V_MC = 14
V_T = 17
VQ = 20
VK = 68
VS = 100
VV = 124
VO = 156
def q(qt, s): return VQ + (qt*4+s)*4
def k(kt, s): return VK + (kt*4+s)*4
def sreg(qt, kt): return VS + qt*8 + kt*4
def vfr(dt): return VV + dt*4
def o(dt, qt): return VO + (dt*3+qt)*4
def r4(b): return f"v[{b}:{b+3}]"
def r2(b): return f"v[{b}:{b+1}]"
import os
INSTR = os.environ.get('INSTR','0')=='1'
stamp_n=[0]
def stamp():
    if not INSTR: return
    e("s_memtime s[44:45]")
    e("s_waitcnt lgkmcnt(0)")
    e(f"v_writelane_b32 v253, s44, {stamp_n[0]}")
    stamp_n[0]+=1


out += hdr_comments
out.append(f"; @launch grid=(256,1,1) block=(512,1,1) lds={LDS_BYTES}")
out.append('.amdgcn_target "amdgcn-amd-amdhsa--gfx950"')
out.append('.text')
out.append(f'.globl {NAME}')
out.append('.p2align 8')
out.append(f'.type {NAME},@function')
lab(NAME)
e("s_cmp_ge_u32 s2, 256")
e("s_cbranch_scc1 L_done")
e("v_mov_b32 v253, 0")
stamp()
e("s_load_dwordx4 s[28:31], s[0:1], 0")
e("s_load_dwordx4 s[32:35], s[0:1], 16")
e("v_lshrrev_b32 v1, 6, v0")
e("v_and_b32 v0, 63, v0")
e("s_nop 0")
e("v_readfirstlane_b32 s27, v1")
e("s_and_b32 s3, s2, 7")
e("s_lshl_b32 s3, s3, 2")
e("s_lshr_b32 s36, s2, 6")
e("s_add_u32 s3, s3, s36")
e("s_lshr_b32 s36, s2, 3")
e("s_and_b32 s36, s36, 7")
e("s_lshl_b32 s37, s3, 3")
e("s_add_u32 s37, s37, s36")
e("s_mul_i32 s38, s37, 12288")
e("s_lshl_b32 s39, s3, 19")
e("s_mov_b32 s40, 0x80000")
e("s_waitcnt lgkmcnt(0)")
e("s_add_u32 s4, s28, s38"); e("s_addc_u32 s5, s29, 0"); e("s_mov_b32 s6, 12288"); e("s_mov_b32 s7, 0x00020000")
e("s_add_u32 s8, s30, s39"); e("s_addc_u32 s9, s31, 0"); e("s_mov_b32 s10, s40"); e("s_mov_b32 s11, 0x00020000")
e("s_add_u32 s12, s32, s39"); e("s_addc_u32 s13, s33, 0"); e("s_mov_b32 s14, s40"); e("s_mov_b32 s15, 0x00020000")
e("s_add_u32 s16, s34, s38"); e("s_addc_u32 s17, s35, 0"); e("s_mov_b32 s18, 12288"); e("s_mov_b32 s19, 0x00020000")
e("s_mov_b32 s20, 0x3e0293ee")
e("v_and_b32 v17, 15, v0")
e("v_lshrrev_b32 v18, 4, v0")
e("v_lshlrev_b32 v1, 8, v17")
e("v_lshl_add_u32 v1, v18, 4, v1")
e("v_lshlrev_b32 v19, 1, v18")
e("v_xor_b32 v2, v17, v19")
e("v_lshlrev_b32 v2, 4, v2")
e("v_lshl_add_u32 v2, v18, 8, v2")
e("v_add_u32 v19, 8, v19")
e("v_xor_b32 v3, v17, v19")
e("v_lshlrev_b32 v3, 4, v3")
e("v_lshl_add_u32 v3, v18, 8, v3")
e("v_lshrrev_b32 v17, 2, v0")
e("v_and_b32 v18, 7, v17")
e("v_lshlrev_b32 v18, 5, v18")
e("v_lshl_add_u32 v4, v17, 8, v18")
e("v_and_b32 v17, 3, v0")
e("v_lshl_add_u32 v4, v17, 3, v4")
e("s_lshl_b32 s41, s27, 14")
e("v_add_u32 v4, s41, v4")
for qt in range(3):
    e(f"v_add_u32 v17, {qt*4096}, v1")
    for s in range(4):
        e(f"buffer_load_dwordx4 {r4(q(qt,s))}, v17, s[4:7], 0 offen offset:{s*64}")
for qt in range(3):
    e(f"v_mov_b32 v{V_M+qt}, 0xff800000")
    e(f"v_mov_b32 v{V_L+qt}, 0")
for i in range(96):
    e(f"v_mov_b32 v{VO+i}, 0")
e("s_lshl_b32 s21, s27, 13")
e("s_add_u32 s22, s21, 4096")
e("s_mov_b32 s23, s21")
e("s_add_u32 s24, s23, 4096")
e("s_mov_b32 s25, s41")

def issue_k():
    for kt in range(2):
        for s in range(4):
            e(f"buffer_load_dwordx4 {r4(k(kt,s))}, v{V_KOFF}, s[8:11], s{21+kt} offen offset:{s*64}")
    e("s_add_u32 s21, s21, 65536"); e("s_add_u32 s22, s22, 65536")
def issue_v():
    for h in range(2):
        e(f"s_add_u32 m0, s25, {h*4096}")
        e("s_nop 0")
        for i in range(4):
            e(f"buffer_load_dwordx4 v{V_VE if i%2==0 else V_VO}, s[12:15], s{23+h} offen offset:{i*1024} lds")
    e("s_add_u32 s23, s23, 65536"); e("s_add_u32 s24, s24, 65536")
    e("s_xor_b32 s25, s25, 8192")
issue_v(); issue_k(); issue_v()
stamp()
e("s_mov_b32 s26, 0")
e("s_mov_b32 s42, 0")
lab("L_loop")
e("s_waitcnt vmcnt(8)")
for s in range(4):
    for kt in range(2):
        for qt in range(3):
            c = "0" if s == 0 else r4(sreg(qt,kt))
            e(f"v_mfma_f32_16x16x32_bf16 {r4(sreg(qt,kt))}, {r4(k(kt,s))}, {r4(q(qt,s))}, {c}")
issue_k()
e(f"v_add_u32 v17, s42, v{V_TR}")
for dt in range(8):
    if dt == 0:
        areg = 17
    else:
        e(f"v_xor_b32 v18, {dt<<5}, v17"); areg = 18
    e(f"ds_read_b64_tr_b16 {r2(vfr(dt))}, v{areg}")
    e(f"ds_read_b64_tr_b16 {r2(vfr(dt)+2)}, v{areg} offset:4096")
e("s_nop 4")
for qt in range(3):
    b = sreg(qt,0)
    e(f"v_max3_f32 v17, v{b}, v{b+1}, v{b+2}")
    e(f"v_max3_f32 v17, v17, v{b+3}, v{b+4}")
    e(f"v_max3_f32 v17, v17, v{b+5}, v{b+6}")
    e(f"v_max3_f32 v17, v17, v{b+7}, v{V_M+qt}")
    e(f"v_mov_b32 v18, v17")
    e("s_nop 1")
    e("v_permlane32_swap_b32 v17, v18")
    e("s_nop 1")
    e("v_max_f32 v17, v17, v18")
    e(f"v_mov_b32 v18, v17")
    e("s_nop 1")
    e("v_permlane16_swap_b32 v17, v18")
    e("s_nop 1")
    e("v_max_f32 v17, v17, v18")
    e(f"v_mul_f32 v{V_MC+qt}, s20, v17")
    e(f"v_fma_f32 v{V_AL+qt}, v{V_M+qt}, s20, -v{V_MC+qt}")
    e(f"v_exp_f32 v{V_AL+qt}, v{V_AL+qt}")
    e(f"v_mov_b32 v{V_M+qt}, v17")
    for j in range(8):
        e(f"v_fma_f32 v{b+j}, v{b+j}, s20, -v{V_MC+qt}")
    for j in range(8):
        e(f"v_exp_f32 v{b+j}, v{b+j}")
    e(f"v_mul_f32 v{V_L+qt}, v{V_L+qt}, v{V_AL+qt}")
    for j in range(8):
        e(f"v_add_f32 v{V_L+qt}, v{V_L+qt}, v{b+j}")
    for j in range(4):
        e(f"v_cvt_pk_bf16_f32 v{b+j}, v{b+2*j}, v{b+2*j+1}")
    for dt in range(8):
        for r in range(4):
            e(f"v_mul_f32 v{o(dt,qt)+r}, v{o(dt,qt)+r}, v{V_AL+qt}")
e("s_waitcnt lgkmcnt(0)")
issue_v()
for dt in range(8):
    for qt in range(3):
        e(f"v_mfma_f32_16x16x32_bf16 {r4(o(dt,qt))}, {r4(vfr(dt))}, {r4(sreg(qt,0))}, {r4(o(dt,qt))}")
if INSTR:
    e("s_memtime s[44:45]")
    e("s_waitcnt lgkmcnt(0)")
    e("s_add_u32 s46, s26, 2")
    e("s_mov_b32 m0, s46")
    e("s_nop 4")
    e("v_writelane_b32 v253, s44, m0")
    stamp_n[0]=10
e("s_xor_b32 s42, s42, 8192")
e("s_add_u32 s26, s26, 1")
e("s_cmp_lt_u32 s26, 8")
e("s_cbranch_scc1 L_loop")
e("s_waitcnt vmcnt(0) lgkmcnt(0)")
e("s_nop 7")
for qt in range(3):
    e(f"v_mov_b32 v18, v{V_L+qt}")
    e("s_nop 1")
    e(f"v_permlane32_swap_b32 v{V_L+qt}, v18")
    e("s_nop 1")
    e(f"v_add_f32 v{V_L+qt}, v{V_L+qt}, v18")
    e(f"v_mov_b32 v18, v{V_L+qt}")
    e("s_nop 1")
    e(f"v_permlane16_swap_b32 v{V_L+qt}, v18")
    e("s_nop 1")
    e(f"v_add_f32 v{V_L+qt}, v{V_L+qt}, v18")
e("v_and_b32 v17, 15, v0")
e("v_lshlrev_b32 v17, 2, v17")
e("s_mul_i32 s43, s27, 192")
e("s_add_u32 s43, s43, 131072")
e("v_add_u32 v18, s43, v17")
for qt in range(3):
    e(f"ds_write_b32 v18, v{V_M+qt} offset:{qt*64}")
e("s_waitcnt lgkmcnt(0)")
e("s_barrier")
stamp()
e("v_add_u32 v19, 131072, v17")
for qt in range(3):
    for w in range(8):
        e(f"ds_read_b32 v{VS+qt*8+w}, v19 offset:{w*192+qt*64}")
e("s_waitcnt lgkmcnt(0)")
for qt in range(3):
    b = VS+qt*8
    e(f"v_max3_f32 v17, v{b}, v{b+1}, v{b+2}")
    e(f"v_max3_f32 v17, v17, v{b+3}, v{b+4}")
    e(f"v_max3_f32 v17, v17, v{b+5}, v{b+6}")
    e(f"v_max_f32 v17, v17, v{b+7}")
    e(f"v_mul_f32 v17, s20, v17")
    e(f"v_fma_f32 v{V_AL+qt}, v{V_M+qt}, s20, -v17")
    e(f"v_exp_f32 v{V_AL+qt}, v{V_AL+qt}")
    e("s_nop 0")
    e(f"v_mul_f32 v{V_L+qt}, v{V_L+qt}, v{V_AL+qt}")
    for dt in range(8):
        for r in range(4):
            e(f"v_mul_f32 v{o(dt,qt)+r}, v{o(dt,qt)+r}, v{V_AL+qt}")
for qt in range(3):
    e(f"ds_write_b32 v18, v{V_L+qt} offset:{2048+qt*64}")
e("v_lshlrev_b32 v17, 4, v0")
e("s_lshl_b32 s43, s27, 14")
e("v_add_u32 v18, s43, v17")
for qt in range(2):
    for dt in range(8):
        e(f"ds_write_b128 v18, {r4(o(dt,qt))} offset:{(qt*8+dt)*1024}")
e("s_waitcnt lgkmcnt(0)")
e("s_barrier")
for qt in range(3):
    for w in range(8):
        e(f"ds_read_b32 v{VS+qt*8+w}, v19 offset:{2048+w*192+qt*64}")
e("s_lshl_b32 s43, s27, 10")
e("v_add_u32 v18, s43, v17")
e("v_add_u32 v1, 65536, v18")
for qt in range(2):
    for w in range(8):
        e(f"ds_read_b128 {r4(o(w,qt))}, v{18 if w<4 else 1} offset:{(w%4)*16384+qt*8192}")
e("s_waitcnt lgkmcnt(0)")
for qt in range(3):
    b = VS+qt*8
    for w in range(1,8):
        e(f"v_add_f32 v{b}, v{b}, v{b+w}")
    e(f"v_rcp_f32 v{V_AL+qt}, v{b}")
for qt in range(2):
    for w in range(1,8):
        for r in range(4):
            e(f"v_add_f32 v{o(0,qt)+r}, v{o(0,qt)+r}, v{o(w,qt)+r}")
e("s_barrier")
e("s_lshl_b32 s43, s27, 13")
e("v_add_u32 v18, s43, v17")
for dt in range(8):
    e(f"ds_write_b128 v18, {r4(o(dt,2))} offset:{dt*1024}")
e("s_waitcnt lgkmcnt(0)")
e("s_barrier")
e("s_lshl_b32 s43, s27, 10")
e("v_add_u32 v18, s43, v17")
for w in range(8):
    e(f"ds_read_b128 {r4(o(w,2))}, v18 offset:{w*8192}")
e("s_waitcnt lgkmcnt(0)")
for w in range(1,8):
    for r in range(4):
        e(f"v_add_f32 v{o(0,2)+r}, v{o(0,2)+r}, v{o(w,2)+r}")
e("v_and_b32 v17, 15, v0")
e("v_lshrrev_b32 v18, 4, v0")
e("v_lshlrev_b32 v17, 8, v17")
e("v_lshl_add_u32 v17, v18, 3, v17")
e("s_lshl_b32 s43, s27, 5")
e("v_add_u32 v17, s43, v17")
for qt in range(3):
    b = o(0,qt)
    for r in range(4):
        e(f"v_mul_f32 v{b+r}, v{b+r}, v{V_AL+qt}")
    e(f"v_cvt_pk_bf16_f32 v{b}, v{b}, v{b+1}")
    e(f"v_cvt_pk_bf16_f32 v{b+1}, v{b+2}, v{b+3}")
    e(f"v_add_u32 v18, {qt*4096}, v17")
    e(f"buffer_store_dwordx2 {r2(b)}, v18, s[16:19], 0 offen")
stamp()
if INSTR:
    e("s_cmp_lg_u32 s2, 0")
    e("s_cbranch_scc1 L_done")
    e("s_cmp_lg_u32 s27, 0")
    e("s_cbranch_scc1 L_done")
    e("s_load_dwordx2 s[48:49], s[0:1], 32")
    e("s_waitcnt lgkmcnt(0)")
    e("s_mov_b32 s50, 64"); e("s_mov_b32 s51, 0x00020000")
    e("v_lshlrev_b32 v17, 2, v0")
    e("buffer_store_dword v253, v17, s[48:51], 0 offen")
lab("L_done")
e("s_endpgm")
out.append('.section .rodata,"a"')
out.append('.p2align 6')
out.append(f'.amdhsa_kernel {NAME}')
out.append('  .amdhsa_next_free_vgpr 256')
out.append('  .amdhsa_next_free_sgpr 64')
out.append('  .amdhsa_accum_offset 256')
out.append('  .amdhsa_group_segment_fixed_size 0')
out.append('  .amdhsa_kernarg_size 48')
out.append('  .amdhsa_user_sgpr_count 2')
out.append('  .amdhsa_user_sgpr_kernarg_segment_ptr 1')
out.append('  .amdhsa_system_sgpr_workgroup_id_x 1')
out.append('.end_amdhsa_kernel')
open(sys.argv[1] if len(sys.argv)>1 else 'standalone__gqa_softmax__near_ridge.s','w').write('\n'.join(out)+'\n')
```

```python
import sys, os
out = []
def e(s): out.append("    " + s)
def lab(s): out.append(s + ":")
HDR = open('standalone__gqa_softmax__near_ridge.s.ref').read().split('\n')
hdr_comments = [l for l in HDR if l.startswith(';') and '@launch' not in l]
LDS_BYTES = 163840
NAME = "standalone__gqa_softmax__near_ridge_kernel"
NAME2 = "gqa_combine_kernel"
INSTR = os.environ.get('INSTR','0')=='1'
GAP = float(os.environ.get('GAP','4'))
V_D = 1; V_KR = 5; V_TR = 9; V_MC = 17; V_L = 20; V_T = 23
VQ = 32; VK = 80; VS = 112; VO = 160
V_DBG=31
def q(qt, s): return VQ + (qt*4+s)*4
def k(kt, s): return VK + (kt*4+s)*4
def sreg(buf, qt, kt): return VS + buf*24 + qt*8 + kt*4
def vfr(dt): return VK + dt*4
def o(dt, qt): return VO + (dt*3+qt)*4
def r4(b): return f"v[{b}:{b+3}]"
def r2(b): return f"v[{b}:{b+1}]"
def stamp():
    if not INSTR: return
    e("s_memtime s[60:61]")
    e("s_waitcnt lgkmcnt(0)")
    e("s_mov_b32 m0, s62")
    e("s_add_u32 s62, s62, 1")
    e("s_nop 4")
    e(f"v_writelane_b32 v{V_DBG}, s60, m0")
VRING = 65536
QB = 114688
out += hdr_comments
out.append(f"; @launch kernel={NAME} grid=(256,1,1) block=(512,1,1) lds={LDS_BYTES}")
out.append(f"; @launch kernel={NAME2} grid=(256,1,1) block=(256,1,1) lds=0")
out.append('.amdgcn_target "amdgcn-amd-amdhsa--gfx950"')
out.append('.text')
out.append(f'.globl {NAME}')
out.append('.p2align 8')
out.append(f'.type {NAME},@function')
lab(NAME)
e("s_cmp_ge_u32 s2, 256")
e("s_cbranch_scc1 L_done")
if INSTR:
    e(f"v_mov_b32 v{V_DBG}, 0"); e("s_mov_b32 s62, 0")
stamp()
e("s_load_dwordx4 s[28:31], s[0:1], 0")
e("s_load_dwordx2 s[32:33], s[0:1], 16")
e("s_load_dwordx2 s[34:35], s[0:1], 40")
e("v_lshrrev_b32 v1, 6, v0")
e("v_and_b32 v0, 63, v0")
e("s_nop 0")
e("v_readfirstlane_b32 s27, v1")
e("s_and_b32 s3, s2, 7")
e("s_lshl_b32 s3, s3, 2")
e("s_lshr_b32 s36, s2, 6")
e("s_add_u32 s3, s3, s36")
e("s_lshr_b32 s36, s2, 5")
e("s_and_b32 s36, s36, 1")
e("s_lshr_b32 s37, s2, 3")
e("s_and_b32 s37, s37, 3")
e("s_and_b32 s52, s27, 3")
e("s_lshr_b32 s53, s27, 2")
e("s_lshr_b32 s56, s52, 1")
e("s_and_b32 s57, s52, 1")
e("s_lshl_b32 s54, s3, 1")
e("s_add_u32 s54, s54, s36")
e("s_lshl_b32 s55, s54, 2")
e("s_add_u32 s54, s55, s37")
e("s_add_u32 s55, s55, s52")
e("s_mul_i32 s38, s55, 12288")
e("s_lshl_b32 s39, s3, 19")
e("s_lshl_b32 s40, s37, 17")
e("s_add_u32 s39, s39, s40")
e("v_and_b32 v23, 15, v0")
e("v_lshrrev_b32 v24, 4, v0")
e("v_lshlrev_b32 v25, s56, v24")
e("v_xor_b32 v25, v23, v25")
e("v_lshlrev_b32 v25, 4, v25")
e(f"v_lshl_add_u32 v{V_D}, v24, 8, v25")
e("s_cmp_eq_u32 s56, 0")
e("s_cselect_b32 s58, 0x40, 0x80")
e("s_cselect_b32 s59, 0x80, 0")
e("s_cselect_b32 s63, 0x40, 0")
e("s_add_u32 s63, s63, 0x80")
e(f"v_xor_b32 v{V_D+1}, s58, v{V_D}")
e(f"v_xor_b32 v{V_D+2}, s59, v{V_D}")
e(f"v_xor_b32 v{V_D+3}, s63, v{V_D}")
e("s_lshl_b32 s41, s53, 15")
e("v_xor_b32 v25, v23, v24")
e("v_lshlrev_b32 v25, 4, v25")
e("v_lshl_add_u32 v25, v23, 8, v25")
e(f"v_add_u32 v{V_KR}, s41, v25")
for s in range(1,4):
    e(f"v_xor_b32 v{V_KR+s}, {s<<6}, v{V_KR}")
e("v_lshrrev_b32 v25, 2, v0")
e("v_and_b32 v26, 7, v25")
e("v_lshlrev_b32 v26, 5, v26")
e("v_lshl_add_u32 v26, v25, 8, v26")
e("v_and_b32 v25, 3, v0")
e("v_lshl_add_u32 v26, v25, 3, v26")
e("s_lshl_b32 s42, s53, 13")
e(f"s_add_u32 s42, s42, {VRING}")
e(f"v_add_u32 v{V_TR}, s42, v26")
e("s_lshl_b32 s44, s53, 7")
e(f"v_xor_b32 v{V_TR}, s44, v{V_TR}")
for dt in range(1,8):
    e(f"v_xor_b32 v{V_TR+dt}, {dt<<5}, v{V_TR}")
e("s_mov_b32 s20, 0x3e0293ee")
e("s_lshl_b32 s21, s53, 13")
e("s_lshl_b32 s44, s57, 12")
e("s_add_u32 s21, s21, s44")
e("s_cmp_eq_u32 s56, 0")
e("s_cselect_b32 s43, s41, s42")
e("s_add_u32 s43, s43, s44")
e("s_lshl_b32 s48, 0x2000, s56")
e("s_waitcnt lgkmcnt(0)")
e("s_cmp_eq_u32 s56, 0")
e("s_cselect_b32 s8, s30, s32")
e("s_cselect_b32 s9, s31, s33")
e("s_add_u32 s8, s8, s39"); e("s_addc_u32 s9, s9, 0"); e("s_mov_b32 s10, 0x20000"); e("s_mov_b32 s11, 0x00020000")
e("s_add_u32 s4, s28, s38"); e("s_addc_u32 s5, s29, 0"); e("s_mov_b32 s6, 12288"); e("s_mov_b32 s7, 0x00020000")
def dma4(m0line, so):
    e(m0line)
    e("s_nop 0")
    for i in range(4):
        e(f"buffer_load_dwordx4 v{V_D+i}, s[8:11], {so} offen offset:{i*1024} lds")
def qdma():
    e("v_xor_b32 v28, v23, v24")
    e("v_lshlrev_b32 v28, 4, v28")
    e("v_lshl_add_u32 v28, v24, 8, v28")
    e("s_lshl_b32 s44, s53, 7")
    e("v_xor_b32 v28, s44, v28")
    e("v_xor_b32 v27, 0x40, v28")
    e("s_lshl_b32 s44, s53, 11")
    e("s_mul_i32 s45, s52, 12288")
    e("s_add_u32 s45, s45, s44")
    e(f"s_add_u32 s45, s45, {QB}")
    for n in range(3):
        e(f"s_add_u32 m0, s45, {n*4096}")
        e("s_nop 0")
        e(f"buffer_load_dwordx4 v28, s[4:7], s44 offen lds")
        e(f"buffer_load_dwordx4 v27, s[4:7], s44 offen offset:1024 lds")
        e("s_add_u32 s44, s44, 4096")
e("s_cmp_lg_u32 s56, 0")
e("s_cbranch_scc1 L_vr")
dma4("s_mov_b32 m0, s43", "s21")
e("s_add_u32 s21, s21, 16384")
qdma()
for t in range(1,4):
    dma4(f"s_add_u32 m0, s43, {t*8192}", "s21")
    e("s_add_u32 s21, s21, 16384")
e("s_mov_b32 s25, s43")
e("s_branch L_pj")
lab("L_vr")
qdma()
for t in range(3):
    dma4(f"s_add_u32 m0, s43, {t*16384}", "s21")
    e("s_add_u32 s21, s21, 16384")
e("s_add_u32 s25, s43, 49152")
lab("L_pj")
e("s_lshl_b32 s50, s48, 2")
e("s_add_u32 s50, s50, s43")
for qt in range(3):
    e(f"v_mov_b32 v{V_MC+qt}, 0xff800000")
    e(f"v_mov_b32 v{V_L+qt}, 0")
for i in range(96):
    e(f"v_mov_b32 v{VO+i}, 0")
for qt in range(3):
    for r in range(4):
        e(f"v_mov_b32 v{sreg(1,qt,0)+r}, 0")
stamp()
e("s_waitcnt vmcnt(12)")
e("s_barrier")
stamp()
e("v_xor_b32 v28, v23, v24")
e("v_lshlrev_b32 v28, 4, v28")
e("v_lshl_add_u32 v28, v23, 8, v28")
e("s_mul_i32 s45, s52, 12288")
e(f"s_add_u32 s45, s45, {QB}")
e("v_add_u32 v28, s45, v28")
for s_ in range(4):
    e(f"v_xor_b32 v27, {s_<<6}, v28")
    for qt in range(3):
        e(f"ds_read_b128 {r4(q(qt,s_))}, v27 offset:{qt*4096}")
for kt in range(2):
    for s in range(4):
        e(f"ds_read_b128 {r4(k(kt,s))}, v{V_KR+s} offset:{kt*4096}")
e("s_waitcnt lgkmcnt(0)")
for s in range(4):
    for kt in range(2):
        for qt in range(3):
            c = "0" if s == 0 else r4(sreg(0,qt,kt))
            e(f"v_mfma_f32_16x16x32_bf16 {r4(sreg(0,qt,kt))}, {r4(k(kt,s))}, {r4(q(qt,s))}, {c}")
e("s_mov_b32 s26, 0")
def pv(buf):
    for qt in range(3):
        for dt in range(8):
            e(f"v_mfma_f32_16x16x32_bf16 {r4(o(dt,qt))}, {r4(vfr(dt))}, {r4(sreg(buf,qt,0))}, {r4(o(dt,qt))}")
def body(it, var):
    cur, nxt = it&1, 1-(it&1)
    stamp()
    if var: e("s_waitcnt vmcnt(8) lgkmcnt(0)")
    else: e("s_waitcnt vmcnt(8)")
    e("s_barrier")
    stamp()
    dma4("s_mov_b32 m0, s25", "s21")
    e("s_add_u32 s21, s21, 16384")
    e("s_add_u32 s25, s25, s48")
    e("s_cmp_eq_u32 s25, s50")
    e("s_cselect_b32 s25, s43, s25")
    if var: pv(nxt)
    kslot = (it+1)&3
    for kt in range(2):
        for s in range(4):
            e(f"ds_read_b128 {r4(k(kt,s))}, v{V_KR+s} offset:{kslot*8192+kt*4096}")
    for qt in range(3):
        b = sreg(cur,qt,0)
        e(f"v_max3_f32 v{V_T+qt}, v{b}, v{b+1}, v{b+2}")
        e(f"v_max3_f32 v{V_T+qt}, v{V_T+qt}, v{b+3}, v{b+4}")
        e(f"v_max3_f32 v{V_T+qt}, v{V_T+qt}, v{b+5}, v{b+6}")
        e(f"v_max_f32 v{V_T+qt}, v{V_T+qt}, v{b+7}")
        e(f"v_fma_f32 v{V_T+3+qt}, v{V_T+qt}, s20, -v{V_MC+qt}")
    e(f"v_max3_f32 v{V_T+3}, v{V_T+3}, v{V_T+4}, v{V_T+5}")
    e(f"v_cmp_lt_f32 vcc, 0x41000000, v{V_T+3}")
    e(f"s_cbranch_vccnz L_rescale{it}_{var}")
    lab(f"L_exp{it}_{var}")
    stamp()
    e("s_waitcnt lgkmcnt(0)")
    va = []
    for qt in range(3):
        b = sreg(cur,qt,0)
        for j in range(8): va.append((f"v_fma_f32 v{b+j}, v{b+j}, s20, -v{V_MC+qt}",1))
        for j in range(8): va.append((f"v_exp_f32 v{b+j}, v{b+j}",4))
        for j in range(8): va.append((f"v_add_f32 v{V_L+qt}, v{V_L+qt}, v{b+j}",1))
        for j in range(4): va.append((f"v_cvt_pk_bf16_f32 v{b+j}, v{b+2*j}, v{b+2*j+1}",1))
    mf = []
    for s in range(4):
        for kt in range(2):
            for qt in range(3):
                c = "0" if s == 0 else r4(sreg(nxt,qt,kt))
                mf.append(f"v_mfma_f32_16x16x32_bf16 {r4(sreg(nxt,qt,kt))}, {r4(k(kt,s))}, {r4(q(qt,s))}, {c}")
    vslot = it&3
    acc = 0.0; mi = 0; trdone = False
    for (ins, cost) in va:
        while mi < len(mf) and acc >= mi*GAP:
            e(mf[mi]); mi += 1
        if mi == len(mf) and not trdone:
            trdone = True
            for dt in range(8):
                e(f"ds_read_b64_tr_b16 {r2(vfr(dt))}, v{V_TR+dt} offset:{vslot*16384}")
                e(f"ds_read_b64_tr_b16 {r2(vfr(dt)+2)}, v{V_TR+dt} offset:{vslot*16384+4096}")
        e(ins); acc += cost
    assert trdone
    if not var:
        stamp()
        e("s_waitcnt lgkmcnt(0)")
        pv(cur)
e("s_cmp_lg_u32 s53, 0")
e("s_cbranch_scc1 L_loopB")
for var in range(2):
    lab("L_loop" if var==0 else "L_loopB")
    for it in range(4): body(it, var)
    e("s_add_u32 s26, s26, 4")
    e("s_cmp_lt_u32 s26, 8")
    e(f"s_cbranch_scc1 {'L_loop' if var==0 else 'L_loopB'}")
    if var:
        e("s_waitcnt lgkmcnt(0)")
        pv(1)
    e("s_branch L_epi")
for var in range(2):
  for it in range(4):
    lab(f"L_rescale{it}_{var}")
    for qt in range(3):
        t = V_T+qt
        e(f"v_mov_b32 v{V_T+6}, v{t}")
        e("s_nop 1")
        e(f"v_permlane32_swap_b32 v{t}, v{V_T+6}")
        e("s_nop 1")
        e(f"v_max_f32 v{t}, v{t}, v{V_T+6}")
        e(f"v_mov_b32 v{V_T+6}, v{t}")
        e("s_nop 1")
        e(f"v_permlane16_swap_b32 v{t}, v{V_T+6}")
        e("s_nop 1")
        e(f"v_max_f32 v{t}, v{t}, v{V_T+6}")
        e(f"v_mul_f32 v{t}, s20, v{t}")
        e(f"v_max_f32 v{t}, v{t}, v{V_MC+qt}")
        e(f"v_sub_f32 v{V_T+6}, v{V_MC+qt}, v{t}")
        e(f"v_exp_f32 v{V_T+6}, v{V_T+6}")
        e(f"v_mov_b32 v{V_MC+qt}, v{t}")
        e(f"v_mul_f32 v{V_L+qt}, v{V_L+qt}, v{V_T+6}")
        for dt in range(8):
            for r in range(4):
                e(f"v_mul_f32 v{o(dt,qt)+r}, v{o(dt,qt)+r}, v{V_T+6}")
    e(f"s_branch L_exp{it}_{var}")
lab("L_epi")
stamp()
e("s_waitcnt vmcnt(0) lgkmcnt(0)")
e("s_nop 7")
MLB = 131072
SB = VS
for qt in range(3):
    e(f"v_mov_b32 v23, v{V_L+qt}")
    e("s_nop 1")
    e(f"v_permlane32_swap_b32 v{V_L+qt}, v23")
    e("s_nop 1")
    e(f"v_add_f32 v{V_L+qt}, v{V_L+qt}, v23")
    e(f"v_mov_b32 v23, v{V_L+qt}")
    e("s_nop 1")
    e(f"v_permlane16_swap_b32 v{V_L+qt}, v23")
    e("s_nop 1")
    e(f"v_add_f32 v{V_L+qt}, v{V_L+qt}, v23")
e("v_and_b32 v23, 15, v0")
e("v_lshlrev_b32 v23, 2, v23")
e("s_mul_i32 s43, s27, 192")
e(f"s_add_u32 s43, s43, {MLB}")
e("v_add_u32 v24, s43, v23")
e("v_lshlrev_b32 v25, 4, v0")
e("s_xor_b32 s44, s27, 4")
e("s_mul_i32 s45, s44, 12288")
e("v_add_u32 v26, s45, v25")
e("s_mul_i32 s45, s27, 12288")
e("v_add_u32 v27, s45, v25")
e("s_mul_i32 s44, s44, 192")
e(f"s_add_u32 s44, s44, {MLB}")
e("v_add_u32 v28, s44, v23")
stamp()
e("s_barrier")
stamp()
for qt in range(3):
    e(f"ds_write_b32 v24, v{V_MC+qt} offset:{qt*64}")
    e(f"ds_write_b32 v24, v{V_L+qt} offset:{2048+qt*64}")
for a in range(4):
    for qt in range(3):
        e(f"ds_write_b128 v26, {r4(o(4+a,qt))} offset:{(a*3+qt)*1024}")
e("s_waitcnt lgkmcnt(0)")
e("s_barrier")
stamp()
for qt in range(3):
    e(f"ds_read_b32 v{SB+qt}, v28 offset:{qt*64}")
    e(f"ds_read_b32 v{SB+3+qt}, v28 offset:{2048+qt*64}")
for a in range(4):
    for qt in range(3):
        e(f"ds_read_b128 {r4(o(4+a,qt))}, v27 offset:{(a*3+qt)*1024}")
e("s_waitcnt lgkmcnt(0)")
for qt in range(3):
    e(f"v_max_f32 v30, v{SB+qt}, v{V_MC+qt}")
    e(f"v_sub_f32 v{SB+6+qt}, v{V_MC+qt}, v30")
    e(f"v_sub_f32 v{SB+qt}, v{SB+qt}, v30")
    e(f"v_mov_b32 v{V_MC+qt}, v30")
    e(f"v_exp_f32 v{SB+6+qt}, v{SB+6+qt}")
    e(f"v_exp_f32 v{SB+qt}, v{SB+qt}")
    e("s_nop 0")
    e(f"v_mul_f32 v{V_L+qt}, v{V_L+qt}, v{SB+6+qt}")
    e(f"v_fmac_f32 v{V_L+qt}, v{SB+3+qt}, v{SB+qt}")
    for a in range(4):
        for r in range(4):
            e(f"v_mul_f32 v{o(a,qt)+r}, v{o(a,qt)+r}, v{SB+6+qt}")
            e(f"v_fmac_f32 v{o(a,qt)+r}, v{o(4+a,qt)+r}, v{SB+qt}")
stamp()
e("s_mul_i32 s43, s54, 49152")
e("s_add_u32 s12, s34, s43"); e("s_addc_u32 s13, s35, 0"); e("s_mov_b32 s14, 49152"); e("s_mov_b32 s15, 0x00020000")
e("v_and_b32 v23, 15, v0")
e("v_lshlrev_b32 v25, 3, v0")
e("s_lshl_b32 s43, s52, 1")
e("s_add_u32 s43, s43, s53")
e("s_mul_i32 s43, s43, 6144")
e("s_add_u32 s44, s43, 4096")
for a in range(4):
    for qt in range(3):
        bi = a*3+qt
        b = o(a,qt)
        e(f"v_cvt_pk_bf16_f32 v{SB+12+2*bi}, v{b}, v{b+1}")
        e(f"v_cvt_pk_bf16_f32 v{SB+13+2*bi}, v{b+2}, v{b+3}")
        e(f"buffer_store_dwordx2 v[{SB+12+2*bi}:{SB+13+2*bi}], v25, s[12:15], {['s43','s44'][bi//8]} offen offset:{(bi%8)*512}")
e("s_cmp_lg_u32 s53, 0")
e("s_cbranch_scc1 L_done")
e("s_mul_i32 s43, s54, 1536")
e("s_add_u32 s43, s43, 0x2000000")
e("s_add_u32 s16, s34, s43"); e("s_addc_u32 s17, s35, 0"); e("s_mov_b32 s18, 1536"); e("s_mov_b32 s19, 0x00020000")
e("v_lshlrev_b32 v25, 3, v23")
e("s_mul_i32 s43, s52, 384")
e("v_add_u32 v25, s43, v25")
for qt in range(3):
    e(f"v_mov_b32 v{SB+2*qt}, v{V_MC+qt}")
    e(f"v_mov_b32 v{SB+2*qt+1}, v{V_L+qt}")
    e(f"buffer_store_dwordx2 v[{SB+2*qt}:{SB+2*qt+1}], v25, s[16:19], 0 offen offset:{qt*128}")
stamp()
if INSTR:
    e("s_cmp_lg_u32 s2, 0")
    e("s_cbranch_scc1 L_done")
    e("s_cmp_lg_u32 s27, 0")
    e("s_cbranch_scc1 L_done")
    e("s_load_dwordx2 s[48:49], s[0:1], 32")
    e("s_waitcnt lgkmcnt(0)")
    e("s_mov_b32 s50, 256"); e("s_mov_b32 s51, 0x00020000")
    e("v_lshlrev_b32 v25, 2, v0")
    e(f"buffer_store_dword v{V_DBG}, v25, s[48:51], 0 offen")
lab("L_done")
e("s_endpgm")
out.append(f'.globl {NAME2}')
out.append('.p2align 8')
out.append(f'.type {NAME2},@function')
lab(NAME2)
e("s_cmp_ge_u32 s2, 256")
e("s_cbranch_scc1 L2_done")
e("s_load_dwordx2 s[4:5], s[0:1], 24")
e("s_load_dwordx2 s[6:7], s[0:1], 40")
e("s_and_b32 s3, s2, 7")
e("s_lshl_b32 s3, s3, 2")
e("s_lshr_b32 s8, s2, 6")
e("s_add_u32 s3, s3, s8")
e("s_lshr_b32 s8, s2, 3")
e("s_and_b32 s8, s8, 7")
e("s_lshl_b32 s14, s3, 3")
e("s_add_u32 s14, s14, s8")
e("s_lshr_b32 s3, s14, 2")
e("s_and_b32 s8, s14, 3")
e("s_mul_i32 s9, s3, 196608")
e("s_mul_i32 s10, s8, 12288")
e("s_add_u32 s9, s9, s10")
e("s_mul_i32 s11, s3, 6144")
e("s_mul_i32 s12, s8, 384")
e("s_add_u32 s11, s11, s12")
e("s_add_u32 s11, s11, 0x2000000")
e("s_mul_i32 s13, s14, 12288")
e("s_waitcnt lgkmcnt(0)")
e("s_add_u32 s16, s6, s9"); e("s_addc_u32 s17, s7, 0"); e("s_mov_b32 s18, 159744"); e("s_mov_b32 s19, 0x00020000")
e("s_add_u32 s20, s6, s11"); e("s_addc_u32 s21, s7, 0"); e("s_mov_b32 s22, 4992"); e("s_mov_b32 s23, 0x00020000")
e("s_add_u32 s24, s4, s13"); e("s_addc_u32 s25, s5, 0"); e("s_mov_b32 s26, 12288"); e("s_mov_b32 s27, 0x00020000")
e("v_lshrrev_b32 v1, 6, v0")
e("v_and_b32 v2, 63, v0")
e("s_nop 0")
e("v_readfirstlane_b32 s31, v1")
e("s_lshr_b32 s32, s31, 1")
e("s_and_b32 s33, s31, 1")
e("s_mul_i32 s34, s32, 6144")
e("s_mul_i32 s35, s33, 3072")
e("s_add_u32 s34, s34, s35")
e("v_lshlrev_b32 v3, 3, v2")
e("v_add_u32 v3, s34, v3")
e("v_and_b32 v4, 15, v2")
e("v_lshlrev_b32 v5, 3, v4")
e("v_add_u32 v8, 3072, v5")
e("v_lshrrev_b32 v6, 4, v2")
e("v_lshlrev_b32 v7, 8, v4")
e("v_lshl_add_u32 v7, v6, 3, v7")
e("s_lshl_b32 s35, s31, 6")
e("v_add_u32 v7, s35, v7")
e("s_mov_b32 s28, 49152"); e("s_mov_b32 s29, 98304"); e("s_mov_b32 s30, 147456")
so = ["0","s28","s29","s30"]
for qt in range(3):
    for p in range(4):
        e(f"buffer_load_dwordx2 v[{16+qt*8+2*p}:{17+qt*8+2*p}], v{5 if p<2 else 8}, s[20:23], 0 offen offset:{(p%2)*1536+qt*128}")
for bi in range(6):
    for p in range(4):
        b = 48 + (bi*4+p)*4
        e(f"buffer_load_dwordx2 v[{b}:{b+1}], v3, s[16:19], {so[p]} offen offset:{bi*512}")
e("s_waitcnt vmcnt(24)")
for qt in range(3):
    m = 16+qt*8; t = 40+qt*0
    f = 144+qt*4
    e(f"v_max3_f32 v40, v{m}, v{m+2}, v{m+4}")
    e(f"v_max_f32 v40, v40, v{m+6}")
    for p in range(4): e(f"v_sub_f32 v{f+p}, v{m+2*p}, v40")
    for p in range(4): e(f"v_exp_f32 v{f+p}, v{f+p}")
    e("s_nop 0")
    e(f"v_mul_f32 v41, v{m+1}, v{f}")
    for p in range(1,4): e(f"v_fmac_f32 v41, v{m+2*p+1}, v{f+p}")
    e(f"v_rcp_f32 v41, v41")
    e("s_nop 0")
    for p in range(4): e(f"v_mul_f32 v{f+p}, v{f+p}, v41")
for bi in range(6):
    a, qt = bi//3, bi%3
    f = 144+qt*4
    b = 48 + bi*16
    e(f"s_waitcnt vmcnt({(5-bi)*4 + bi})")
    for p in range(4):
        e(f"v_and_b32 v{b+4*p+3}, 0xffff0000, v{b+4*p+1}")
        e(f"v_lshlrev_b32 v{b+4*p+2}, 16, v{b+4*p+1}")
        e(f"v_and_b32 v{b+4*p+1}, 0xffff0000, v{b+4*p}")
        e(f"v_lshlrev_b32 v{b+4*p}, 16, v{b+4*p}")
    for r in range(4):
        e(f"v_mul_f32 v{b+r}, v{b+r}, v{f}")
        for p in range(1,4): e(f"v_fmac_f32 v{b+r}, v{b+4*p+r}, v{f+p}")
    e(f"v_cvt_pk_bf16_f32 v{b}, v{b}, v{b+1}")
    e(f"v_cvt_pk_bf16_f32 v{b+1}, v{b+2}, v{b+3}")
    e(f"v_add_u32 v10, {qt*4096}, v7")
    e(f"buffer_store_dwordx2 v[{b}:{b+1}], v10, s[24:27], 0 offen offset:{a*32}")
lab("L2_done")
e("s_endpgm")
out.append('.section .rodata,"a"')
for nm, nv in ((NAME,256),(NAME2,256)):
    out.append('.p2align 6')
    out.append(f'.amdhsa_kernel {nm}')
    out.append(f'  .amdhsa_next_free_vgpr {nv}')
    out.append('  .amdhsa_next_free_sgpr 64')
    out.append(f'  .amdhsa_accum_offset {nv}')
    out.append('  .amdhsa_group_segment_fixed_size 0')
    out.append('  .amdhsa_kernarg_size 48')
    out.append('  .amdhsa_user_sgpr_count 2')
    out.append('  .amdhsa_user_sgpr_kernarg_segment_ptr 1')
    out.append('  .amdhsa_system_sgpr_workgroup_id_x 1')
    out.append('.end_amdhsa_kernel')
open(sys.argv[1] if len(sys.argv)>1 else 'standalone__gqa_softmax__near_ridge.s','w').write('\n'.join(out)+'\n')
```

```python
import sys, os
out = []
KILL = os.environ.get('KILL','').split(',')
inloop=[False]
def e(s):
    if inloop[0]:
        if 'exp' in KILL and s.startswith('v_exp'): return
        if 'valu' in KILL and (s.startswith('v_exp') or s.startswith('v_fma') or s.startswith('v_add_f32') or s.startswith('v_cvt')): return
        if 'mfma' in KILL and s.startswith('v_mfma'): return
        if 'dma' in KILL and s.startswith('buffer_load'): return
        if 'bar' in KILL and s.startswith('s_barrier'): return
        if 'lds' in KILL and s.startswith('ds_read'): return
    out.append("    " + s)
def lab(s): out.append(s + ":")
HDR = open('standalone__gqa_softmax__near_ridge.s.ref').read().split('\n')
hdr_comments = [l for l in HDR if l.startswith(';') and '@launch' not in l]
LDS_BYTES = 163840
NAME = "standalone__gqa_softmax__near_ridge_kernel"
NAME2 = "gqa_combine_kernel"
INSTR = os.environ.get('INSTR','0')=='1'
GAP = float(os.environ.get('GAP','4'))
V_D = 1; V_KR = 5; V_TR = 9; V_MC = 17; V_L = 20; V_T = 23
VQ = 32; VK = 80; VS = 112; VO = 160
V_DBG=31
def q(qt, s): return VQ + (qt*4+s)*4
def k(kt, s): return VK + (kt*4+s)*4
def sreg(buf, qt, kt): return VS + buf*24 + qt*8 + kt*4
def vfr(dt): return VK + dt*4
def o(dt, qt): return VO + (dt*3+qt)*4
def r4(b): return f"v[{b}:{b+3}]"
def r2(b): return f"v[{b}:{b+1}]"
def stamp():
    if not INSTR: return
    e("s_memtime s[60:61]")
    e("s_waitcnt lgkmcnt(0)")
    e("s_mov_b32 m0, s62")
    e("s_add_u32 s62, s62, 1")
    e("s_nop 4")
    e(f"v_writelane_b32 v{V_DBG}, s60, m0")
VRING = 65536
QB = 114688
out += hdr_comments
out.append(f"; @launch kernel={NAME} grid=(256,1,1) block=(512,1,1) lds={LDS_BYTES}")
out.append(f"; @launch kernel={NAME2} grid=(256,1,1) block=(256,1,1) lds=0")
out.append('.amdgcn_target "amdgcn-amd-amdhsa--gfx950"')
out.append('.text')
out.append(f'.globl {NAME}')
out.append('.p2align 8')
out.append(f'.type {NAME},@function')
lab(NAME)
e("s_cmp_ge_u32 s2, 256")
e("s_cbranch_scc1 L_done")
if INSTR:
    e(f"v_mov_b32 v{V_DBG}, 0"); e("s_mov_b32 s62, 0")
stamp()
e("s_load_dwordx4 s[28:31], s[0:1], 0")
e("s_load_dwordx2 s[32:33], s[0:1], 16")
e("s_load_dwordx2 s[34:35], s[0:1], 40")
e("v_lshrrev_b32 v1, 6, v0")
e("v_and_b32 v0, 63, v0")
e("s_nop 0")
e("v_readfirstlane_b32 s27, v1")
e("s_and_b32 s3, s2, 7")
e("s_lshl_b32 s3, s3, 2")
e("s_lshr_b32 s36, s2, 6")
e("s_add_u32 s3, s3, s36")
e("s_lshr_b32 s36, s2, 5")
e("s_and_b32 s36, s36, 1")
e("s_lshr_b32 s37, s2, 3")
e("s_and_b32 s37, s37, 3")
e("s_and_b32 s52, s27, 3")
e("s_lshr_b32 s53, s27, 2")
e("s_lshr_b32 s56, s52, 1")
e("s_and_b32 s57, s52, 1")
e("s_lshl_b32 s54, s3, 1")
e("s_add_u32 s54, s54, s36")
e("s_lshl_b32 s55, s54, 2")
e("s_add_u32 s54, s55, s37")
e("s_add_u32 s55, s55, s52")
e("s_mul_i32 s38, s55, 12288")
e("s_lshl_b32 s39, s3, 19")
e("s_lshl_b32 s40, s37, 17")
e("s_add_u32 s39, s39, s40")
e("v_and_b32 v23, 15, v0")
e("v_lshrrev_b32 v24, 4, v0")
e("v_lshlrev_b32 v25, s56, v24")
e("v_xor_b32 v25, v23, v25")
e("v_lshlrev_b32 v25, 4, v25")
e(f"v_lshl_add_u32 v{V_D}, v24, 8, v25")
e("s_cmp_eq_u32 s56, 0")
e("s_cselect_b32 s58, 0x40, 0x80")
e("s_cselect_b32 s59, 0x80, 0")
e("s_cselect_b32 s63, 0x40, 0")
e("s_add_u32 s63, s63, 0x80")
e(f"v_xor_b32 v{V_D+1}, s58, v{V_D}")
e(f"v_xor_b32 v{V_D+2}, s59, v{V_D}")
e(f"v_xor_b32 v{V_D+3}, s63, v{V_D}")
e("s_lshl_b32 s41, s53, 15")
e("v_xor_b32 v25, v23, v24")
e("v_lshlrev_b32 v25, 4, v25")
e("v_lshl_add_u32 v25, v23, 8, v25")
e(f"v_add_u32 v{V_KR}, s41, v25")
for s in range(1,4):
    e(f"v_xor_b32 v{V_KR+s}, {s<<6}, v{V_KR}")
e("v_lshrrev_b32 v25, 2, v0")
e("v_and_b32 v26, 7, v25")
e("v_lshlrev_b32 v26, 5, v26")
e("v_lshl_add_u32 v26, v25, 8, v26")
e("v_and_b32 v25, 3, v0")
e("v_lshl_add_u32 v26, v25, 3, v26")
e("s_lshl_b32 s42, s53, 13")
e(f"s_add_u32 s42, s42, {VRING}")
e(f"v_add_u32 v{V_TR}, s42, v26")
e("s_lshl_b32 s44, s53, 7")
e(f"v_xor_b32 v{V_TR}, s44, v{V_TR}")
for dt in range(1,8):
    e(f"v_xor_b32 v{V_TR+dt}, {dt<<5}, v{V_TR}")
e("s_mov_b32 s20, 0x3e0293ee")
e("s_lshl_b32 s21, s53, 13")
e("s_lshl_b32 s44, s57, 12")
e("s_add_u32 s21, s21, s44")
e("s_cmp_eq_u32 s56, 0")
e("s_cselect_b32 s43, s41, s42")
e("s_add_u32 s43, s43, s44")
e("s_lshl_b32 s48, 0x2000, s56")
e("s_waitcnt lgkmcnt(0)")
e("s_cmp_eq_u32 s56, 0")
e("s_cselect_b32 s8, s30, s32")
e("s_cselect_b32 s9, s31, s33")
e("s_add_u32 s8, s8, s39"); e("s_addc_u32 s9, s9, 0"); e("s_mov_b32 s10, 0x20000"); e("s_mov_b32 s11, 0x00020000")
e("s_add_u32 s4, s28, s38"); e("s_addc_u32 s5, s29, 0"); e("s_mov_b32 s6, 12288"); e("s_mov_b32 s7, 0x00020000")
def dma4(m0line, so):
    e(m0line)
    e("s_nop 0")
    for i in range(4):
        e(f"buffer_load_dwordx4 v{V_D+i}, s[8:11], {so} offen offset:{i*1024} lds")
def qdma():
    e("v_xor_b32 v28, v23, v24")
    e("v_lshlrev_b32 v28, 4, v28")
    e("v_lshl_add_u32 v28, v24, 8, v28")
    e("s_lshl_b32 s44, s53, 7")
    e("v_xor_b32 v28, s44, v28")
    e("v_xor_b32 v27, 0x40, v28")
    e("s_lshl_b32 s44, s53, 11")
    e("s_mul_i32 s45, s52, 12288")
    e("s_add_u32 s45, s45, s44")
    e(f"s_add_u32 s45, s45, {QB}")
    for n in range(3):
        e(f"s_add_u32 m0, s45, {n*4096}")
        e("s_nop 0")
        e(f"buffer_load_dwordx4 v28, s[4:7], s44 offen lds")
        e(f"buffer_load_dwordx4 v27, s[4:7], s44 offen offset:1024 lds")
        e("s_add_u32 s44, s44, 4096")
e("s_cmp_lg_u32 s56, 0")
e("s_cbranch_scc1 L_vr")
dma4("s_mov_b32 m0, s43", "s21")
e("s_add_u32 s21, s21, 16384")
qdma()
for t in range(1,3):
    dma4(f"s_add_u32 m0, s43, {t*8192}", "s21")
    e("s_add_u32 s21, s21, 16384")
e("s_add_u32 s25, s43, 24576")
e("s_branch L_pj")
lab("L_vr")
qdma()
for t in range(2):
    dma4(f"s_add_u32 m0, s43, {t*16384}", "s21")
    e("s_add_u32 s21, s21, 16384")
e("s_add_u32 s25, s43, 32768")
lab("L_pj")
e("s_lshl_b32 s50, s48, 2")
e("s_add_u32 s50, s50, s43")
for qt in range(3):
    e(f"v_mov_b32 v{V_MC+qt}, 0xff800000")
    e(f"v_mov_b32 v{V_L+qt}, 0")
for i in range(96):
    e(f"v_mov_b32 v{VO+i}, 0")
for qt in range(3):
    for r in range(4):
        e(f"v_mov_b32 v{sreg(1,qt,0)+r}, 0")
stamp()
e("s_waitcnt vmcnt(8)")
e("s_barrier")
stamp()
e("v_xor_b32 v28, v23, v24")
e("v_lshlrev_b32 v28, 4, v28")
e("v_lshl_add_u32 v28, v23, 8, v28")
e("s_mul_i32 s45, s52, 12288")
e(f"s_add_u32 s45, s45, {QB}")
e("v_add_u32 v28, s45, v28")
for s_ in range(4):
    e(f"v_xor_b32 v27, {s_<<6}, v28")
    for qt in range(3):
        e(f"ds_read_b128 {r4(q(qt,s_))}, v27 offset:{qt*4096}")
for kt in range(2):
    for s in range(4):
        e(f"ds_read_b128 {r4(k(kt,s))}, v{V_KR+s} offset:{kt*4096}")
e("s_waitcnt lgkmcnt(0)")
for s in range(4):
    for kt in range(2):
        for qt in range(3):
            c = "0" if s == 0 else r4(sreg(0,qt,kt))
            e(f"v_mfma_f32_16x16x32_bf16 {r4(sreg(0,qt,kt))}, {r4(k(kt,s))}, {r4(q(qt,s))}, {c}")
e("s_mov_b32 s26, 0")
def mfma_pv(buf, dt, qt):
    return f"v_mfma_f32_16x16x32_bf16 {r4(o(dt,qt))}, {r4(vfr(dt))}, {r4(sreg(buf,qt,0))}, {r4(o(dt,qt))}"
def mfma_qk(buf, kt, s, qt):
    c = "0" if s == 0 else r4(sreg(buf,qt,kt))
    return f"v_mfma_f32_16x16x32_bf16 {r4(sreg(buf,qt,kt))}, {r4(k(kt,s))}, {r4(q(qt,s))}, {c}"
def kread(kt, kslot):
    return [f"ds_read_b128 {r4(k(kt,s))}, v{V_KR+s} offset:{kslot*8192+kt*4096}" for s in range(4)]
def vread(dts, vslot):
    r = []
    for dt in dts:
        r.append(f"ds_read_b64_tr_b16 {r2(vfr(dt))}, v{V_TR+dt} offset:{vslot*16384}")
        r.append(f"ds_read_b64_tr_b16 {r2(vfr(dt)+2)}, v{V_TR+dt} offset:{vslot*16384+4096}")
    return r
def dma_lines():
    r = ["s_mov_b32 m0, s25", "s_nop 0"]
    for i in range(4): r.append(f"buffer_load_dwordx4 v{V_D+i}, s[8:11], s21 offen offset:{i*1024} lds")
    r += ["s_add_u32 s21, s21, 16384", "s_add_u32 s25, s25, s48", "s_cmp_eq_u32 s25, s50", "s_cselect_b32 s25, s43, s25"]
    return r
def maxcheck(cur, tgt):
    for qt in range(3):
        b = sreg(cur,qt,0)
        e(f"v_max3_f32 v{V_T+qt}, v{b}, v{b+1}, v{b+2}")
        e(f"v_max3_f32 v{V_T+qt}, v{V_T+qt}, v{b+3}, v{b+4}")
        e(f"v_max3_f32 v{V_T+qt}, v{V_T+qt}, v{b+5}, v{b+6}")
        e(f"v_max_f32 v{V_T+qt}, v{V_T+qt}, v{b+7}")
        e(f"v_fma_f32 v{V_T+3+qt}, v{V_T+qt}, s20, -v{V_MC+qt}")
    e(f"v_max3_f32 v{V_T+3}, v{V_T+3}, v{V_T+4}, v{V_T+5}")
    e(f"v_cmp_lt_f32 vcc, 0x41000000, v{V_T+3}")
    e(f"s_cbranch_vccnz {tgt}")
def exp_valu(cur):
    va = []
    for qt in range(3):
        b = sreg(cur,qt,0)
        for j in range(8): va.append(f"v_fma_f32 v{b+j}, v{b+j}, s20, -v{V_MC+qt}")
        for j in range(8): va.append(f"v_exp_f32 v{b+j}, v{b+j}")
        for j in range(8): va.append(f"v_add_f32 v{V_L+qt}, v{V_L+qt}, v{b+j}")
        for j in range(4): va.append(f"v_cvt_pk_bf16_f32 v{b+j}, v{b+2*j}, v{b+2*j+1}")
    return va
def fast_body(it, last, name, slow):
    cur, nxt = it&1, 1-(it&1)
    kslot = (it+1)&3; vslot = it&3
    stamp()
    e("s_waitcnt vmcnt(4)")
    e("s_barrier")
    stamp()
    maxcheck(cur, slow)
    st = []
    st.append(('x', "s_waitcnt lgkmcnt(8)"))
    for dt in range(4):
        for qt in range(3): st.append(('m', mfma_pv(nxt, dt, qt)))
        if dt == 0 and not last:
            for l in dma_lines(): st.append(('x', l))
    if not last:
        for l in kread(0, kslot): st.append(('x', l))
        st.append(('x', "s_waitcnt lgkmcnt(4)"))
    else:
        st.append(('x', "s_waitcnt lgkmcnt(0)"))
    for dt in range(4,8):
        for qt in range(3): st.append(('m', mfma_pv(nxt, dt, qt)))
    if not last:
        for l in kread(1, kslot): st.append(('x', l))
        st.append(('x', "s_waitcnt lgkmcnt(4)"))
        for s_ in range(4):
            for qt in range(3): st.append(('m', mfma_qk(nxt, 0, s_, qt)))
        for l in vread(range(4), vslot): st.append(('x', l))
        st.append(('x', "s_waitcnt lgkmcnt(8)"))
        for s_ in range(4):
            for qt in range(3): st.append(('m', mfma_qk(nxt, 1, s_, qt)))
        for l in vread(range(4,8), vslot): st.append(('x', l))
    else:
        for l in vread(range(8), vslot): st.append(('x', l))
    va = exp_valu(cur)
    nm = sum(1 for t,_ in st if t=='m')
    per = len(va)/nm
    acc = 0.0; vi = 0
    for t, txt in st:
        e(txt)
        if t == 'm':
            acc += per
            while vi < len(va) and vi < acc - 1e-9:
                e(va[vi]); vi += 1
    while vi < len(va):
        e(va[vi]); vi += 1
def slow_body(it, last, name, ret):
    cur, nxt = it&1, 1-(it&1)
    kslot = (it+1)&3; vslot = it&3
    lab(name)
    e("s_waitcnt lgkmcnt(0)")
    for dt in range(8):
        for qt in range(3): e(mfma_pv(nxt, dt, qt))
    if not last:
        for l in dma_lines(): e(l)
        for kt in range(2):
            for l in kread(kt, kslot): e(l)
    e("s_nop 7")
    for qt in range(3):
        t = V_T+qt
        e(f"v_mov_b32 v{V_T+6}, v{t}")
        e("s_nop 1")
        e(f"v_permlane32_swap_b32 v{t}, v{V_T+6}")
        e("s_nop 1")
        e(f"v_max_f32 v{t}, v{t}, v{V_T+6}")
        e(f"v_mov_b32 v{V_T+6}, v{t}")
        e("s_nop 1")
        e(f"v_permlane16_swap_b32 v{t}, v{V_T+6}")
        e("s_nop 1")
        e(f"v_max_f32 v{t}, v{t}, v{V_T+6}")
        e(f"v_mul_f32 v{t}, s20, v{t}")
        e(f"v_max_f32 v{t}, v{t}, v{V_MC+qt}")
        e(f"v_sub_f32 v{V_T+6}, v{V_MC+qt}, v{t}")
        e(f"v_exp_f32 v{V_T+6}, v{V_T+6}")
        e(f"v_mov_b32 v{V_MC+qt}, v{t}")
        e(f"v_mul_f32 v{V_L+qt}, v{V_L+qt}, v{V_T+6}")
        for dt in range(8):
            for r in range(4):
                e(f"v_mul_f32 v{o(dt,qt)+r}, v{o(dt,qt)+r}, v{V_T+6}")
    e("s_waitcnt lgkmcnt(0)")
    if not last:
        for kt in range(2):
            for s_ in range(4):
                for qt in range(3): e(mfma_qk(nxt, kt, s_, qt))
    for l in vread(range(8), vslot): e(l)
    for l in exp_valu(cur): e(l)
    e(f"s_branch {ret}")
lab("L_loop")
inloop[0]=True
for it in range(3):
    fast_body(it, False, f"F{it}", f"L_slow{it}")
    lab(f"L_ret{it}")
e("s_cmp_lg_u32 s26, 0")
e("s_cbranch_scc1 L_last")
fast_body(3, False, "F3", "L_slow3")
lab("L_ret3")
e("s_mov_b32 s26, 4")
e("s_branch L_loop")
lab("L_last")
fast_body(3, True, "F3l", "L_slow3l")
lab("L_ret3l")
inloop[0]=False
e("s_waitcnt lgkmcnt(0)")
for dt in range(8):
    for qt in range(3): e(mfma_pv(1, dt, qt))
e("s_branch L_epi")
for it in range(4):
    slow_body(it, False, f"L_slow{it}", f"L_ret{it}")
slow_body(3, True, "L_slow3l", "L_ret3l")
lab("L_epi")
stamp()
e("s_waitcnt vmcnt(0) lgkmcnt(0)")
e("s_nop 7")
MLB = 131072
SB = VS
for qt in range(3):
    e(f"v_mov_b32 v23, v{V_L+qt}")
    e("s_nop 1")
    e(f"v_permlane32_swap_b32 v{V_L+qt}, v23")
    e("s_nop 1")
    e(f"v_add_f32 v{V_L+qt}, v{V_L+qt}, v23")
    e(f"v_mov_b32 v23, v{V_L+qt}")
    e("s_nop 1")
    e(f"v_permlane16_swap_b32 v{V_L+qt}, v23")
    e("s_nop 1")
    e(f"v_add_f32 v{V_L+qt}, v{V_L+qt}, v23")
e("v_and_b32 v23, 15, v0")
e("v_lshlrev_b32 v23, 2, v23")
e("s_mul_i32 s43, s27, 192")
e(f"s_add_u32 s43, s43, {MLB}")
e("v_add_u32 v24, s43, v23")
e("v_lshlrev_b32 v25, 4, v0")
e("s_xor_b32 s44, s27, 4")
e("s_mul_i32 s45, s44, 12288")
e("v_add_u32 v26, s45, v25")
e("s_mul_i32 s45, s27, 12288")
e("v_add_u32 v27, s45, v25")
e("s_mul_i32 s44, s44, 192")
e(f"s_add_u32 s44, s44, {MLB}")
e("v_add_u32 v28, s44, v23")
stamp()
e("s_barrier")
stamp()
for qt in range(3):
    e(f"ds_write_b32 v24, v{V_MC+qt} offset:{qt*64}")
    e(f"ds_write_b32 v24, v{V_L+qt} offset:{2048+qt*64}")
for a in range(4):
    for qt in range(3):
        e(f"ds_write_b128 v26, {r4(o(4+a,qt))} offset:{(a*3+qt)*1024}")
e("s_waitcnt lgkmcnt(0)")
e("s_barrier")
stamp()
for qt in range(3):
    e(f"ds_read_b32 v{SB+qt}, v28 offset:{qt*64}")
    e(f"ds_read_b32 v{SB+3+qt}, v28 offset:{2048+qt*64}")
for a in range(4):
    for qt in range(3):
        e(f"ds_read_b128 {r4(o(4+a,qt))}, v27 offset:{(a*3+qt)*1024}")
e("s_waitcnt lgkmcnt(0)")
for qt in range(3):
    e(f"v_max_f32 v30, v{SB+qt}, v{V_MC+qt}")
    e(f"v_sub_f32 v{SB+6+qt}, v{V_MC+qt}, v30")
    e(f"v_sub_f32 v{SB+qt}, v{SB+qt}, v30")
    e(f"v_mov_b32 v{V_MC+qt}, v30")
    e(f"v_exp_f32 v{SB+6+qt}, v{SB+6+qt}")
    e(f"v_exp_f32 v{SB+qt}, v{SB+qt}")
    e("s_nop 0")
    e(f"v_mul_f32 v{V_L+qt}, v{V_L+qt}, v{SB+6+qt}")
    e(f"v_fmac_f32 v{V_L+qt}, v{SB+3+qt}, v{SB+qt}")
    for a in range(4):
        for r in range(4):
            e(f"v_mul_f32 v{o(a,qt)+r}, v{o(a,qt)+r}, v{SB+6+qt}")
            e(f"v_fmac_f32 v{o(a,qt)+r}, v{o(4+a,qt)+r}, v{SB+qt}")
stamp()
e("s_mul_i32 s43, s54, 49152")
e("s_add_u32 s12, s34, s43"); e("s_addc_u32 s13, s35, 0"); e("s_mov_b32 s14, 49152"); e("s_mov_b32 s15, 0x00020000")
e("v_and_b32 v23, 15, v0")
e("v_lshlrev_b32 v25, 3, v0")
e("s_lshl_b32 s43, s52, 1")
e("s_add_u32 s43, s43, s53")
e("s_mul_i32 s43, s43, 6144")
e("s_add_u32 s44, s43, 4096")
for a in range(4):
    for qt in range(3):
        bi = a*3+qt
        b = o(a,qt)
        e(f"v_cvt_pk_bf16_f32 v{SB+12+2*bi}, v{b}, v{b+1}")
        e(f"v_cvt_pk_bf16_f32 v{SB+13+2*bi}, v{b+2}, v{b+3}")
        e(f"buffer_store_dwordx2 v[{SB+12+2*bi}:{SB+13+2*bi}], v25, s[12:15], {['s43','s44'][bi//8]} offen offset:{(bi%8)*512}")
e("s_cmp_lg_u32 s53, 0")
e("s_cbranch_scc1 L_dump")
e("s_mul_i32 s43, s54, 1536")
e("s_add_u32 s43, s43, 0x2000000")
e("s_add_u32 s16, s34, s43"); e("s_addc_u32 s17, s35, 0"); e("s_mov_b32 s18, 1536"); e("s_mov_b32 s19, 0x00020000")
e("v_lshlrev_b32 v25, 3, v23")
e("s_mul_i32 s43, s52, 384")
e("v_add_u32 v25, s43, v25")
for qt in range(3):
    e(f"v_mov_b32 v{SB+2*qt}, v{V_MC+qt}")
    e(f"v_mov_b32 v{SB+2*qt+1}, v{V_L+qt}")
    e(f"buffer_store_dwordx2 v[{SB+2*qt}:{SB+2*qt+1}], v25, s[16:19], 0 offen offset:{qt*128}")
lab("L_dump")
stamp()
if INSTR:
    e("s_cmp_lg_u32 s2, 0")
    e("s_cbranch_scc1 L_done")
    e(f"s_cmp_lg_u32 s27, {os.environ.get('DW','0')}")
    e("s_cbranch_scc1 L_done")
    e("s_load_dwordx2 s[48:49], s[0:1], 32")
    e("s_waitcnt lgkmcnt(0)")
    e("s_mov_b32 s50, 256"); e("s_mov_b32 s51, 0x00020000")
    e("v_lshlrev_b32 v25, 2, v0")
    e(f"buffer_store_dword v{V_DBG}, v25, s[48:51], 0 offen")
lab("L_done")
e("s_endpgm")
out.append(f'.globl {NAME2}')
out.append('.p2align 8')
out.append(f'.type {NAME2},@function')
lab(NAME2)
e("s_cmp_ge_u32 s2, 256")
e("s_cbranch_scc1 L2_done")
e("s_load_dwordx2 s[4:5], s[0:1], 24")
e("s_load_dwordx2 s[6:7], s[0:1], 40")
e("s_and_b32 s3, s2, 7")
e("s_lshl_b32 s3, s3, 2")
e("s_lshr_b32 s8, s2, 6")
e("s_add_u32 s3, s3, s8")
e("s_lshr_b32 s8, s2, 3")
e("s_and_b32 s8, s8, 7")
e("s_lshl_b32 s14, s3, 3")
e("s_add_u32 s14, s14, s8")
e("s_lshr_b32 s3, s14, 2")
e("s_and_b32 s8, s14, 3")
e("s_mul_i32 s9, s3, 196608")
e("s_mul_i32 s10, s8, 12288")
e("s_add_u32 s9, s9, s10")
e("s_mul_i32 s11, s3, 6144")
e("s_mul_i32 s12, s8, 384")
e("s_add_u32 s11, s11, s12")
e("s_add_u32 s11, s11, 0x2000000")
e("s_mul_i32 s13, s14, 12288")
e("s_waitcnt lgkmcnt(0)")
e("s_add_u32 s16, s6, s9"); e("s_addc_u32 s17, s7, 0"); e("s_mov_b32 s18, 159744"); e("s_mov_b32 s19, 0x00020000")
e("s_add_u32 s20, s6, s11"); e("s_addc_u32 s21, s7, 0"); e("s_mov_b32 s22, 4992"); e("s_mov_b32 s23, 0x00020000")
e("s_add_u32 s24, s4, s13"); e("s_addc_u32 s25, s5, 0"); e("s_mov_b32 s26, 12288"); e("s_mov_b32 s27, 0x00020000")
e("v_lshrrev_b32 v1, 6, v0")
e("v_and_b32 v2, 63, v0")
e("s_nop 0")
e("v_readfirstlane_b32 s31, v1")
e("s_lshr_b32 s32, s31, 1")
e("s_and_b32 s33, s31, 1")
e("s_mul_i32 s34, s32, 6144")
e("s_mul_i32 s35, s33, 3072")
e("s_add_u32 s34, s34, s35")
e("v_lshlrev_b32 v3, 3, v2")
e("v_add_u32 v3, s34, v3")
e("v_and_b32 v4, 15, v2")
e("v_lshlrev_b32 v5, 3, v4")
e("v_add_u32 v8, 3072, v5")
e("v_lshrrev_b32 v6, 4, v2")
e("v_lshlrev_b32 v7, 8, v4")
e("v_lshl_add_u32 v7, v6, 3, v7")
e("s_lshl_b32 s35, s31, 6")
e("v_add_u32 v7, s35, v7")
e("s_mov_b32 s28, 49152"); e("s_mov_b32 s29, 98304"); e("s_mov_b32 s30, 147456")
so = ["0","s28","s29","s30"]
for qt in range(3):
    for p in range(4):
        e(f"buffer_load_dwordx2 v[{16+qt*8+2*p}:{17+qt*8+2*p}], v{5 if p<2 else 8}, s[20:23], 0 offen offset:{(p%2)*1536+qt*128}")
for bi in range(6):
    for p in range(4):
        b = 48 + (bi*4+p)*4
        e(f"buffer_load_dwordx2 v[{b}:{b+1}], v3, s[16:19], {so[p]} offen offset:{bi*512}")
e("s_waitcnt vmcnt(24)")
for qt in range(3):
    m = 16+qt*8; t = 40+qt*0
    f = 144+qt*4
    e(f"v_max3_f32 v40, v{m}, v{m+2}, v{m+4}")
    e(f"v_max_f32 v40, v40, v{m+6}")
    for p in range(4): e(f"v_sub_f32 v{f+p}, v{m+2*p}, v40")
    for p in range(4): e(f"v_exp_f32 v{f+p}, v{f+p}")
    e("s_nop 0")
    e(f"v_mul_f32 v41, v{m+1}, v{f}")
    for p in range(1,4): e(f"v_fmac_f32 v41, v{m+2*p+1}, v{f+p}")
    e(f"v_rcp_f32 v41, v41")
    e("s_nop 0")
    for p in range(4): e(f"v_mul_f32 v{f+p}, v{f+p}, v41")
for bi in range(6):
    a, qt = bi//3, bi%3
    f = 144+qt*4
    b = 48 + bi*16
    e(f"s_waitcnt vmcnt({(5-bi)*4 + bi})")
    for p in range(4):
        e(f"v_and_b32 v{b+4*p+3}, 0xffff0000, v{b+4*p+1}")
        e(f"v_lshlrev_b32 v{b+4*p+2}, 16, v{b+4*p+1}")
        e(f"v_and_b32 v{b+4*p+1}, 0xffff0000, v{b+4*p}")
        e(f"v_lshlrev_b32 v{b+4*p}, 16, v{b+4*p}")
    for r in range(4):
        e(f"v_mul_f32 v{b+r}, v{b+r}, v{f}")
        for p in range(1,4): e(f"v_fmac_f32 v{b+r}, v{b+4*p+r}, v{f+p}")
    e(f"v_cvt_pk_bf16_f32 v{b}, v{b}, v{b+1}")
    e(f"v_cvt_pk_bf16_f32 v{b+1}, v{b+2}, v{b+3}")
    e(f"v_add_u32 v10, {qt*4096}, v7")
    e(f"buffer_store_dwordx2 v[{b}:{b+1}], v10, s[24:27], 0 offen offset:{a*32}")
lab("L2_done")
e("s_endpgm")
out.append('.section .rodata,"a"')
for nm, nv in ((NAME,256),(NAME2,256)):
    out.append('.p2align 6')
    out.append(f'.amdhsa_kernel {nm}')
    out.append(f'  .amdhsa_next_free_vgpr {nv}')
    out.append('  .amdhsa_next_free_sgpr 64')
    out.append(f'  .amdhsa_accum_offset {nv}')
    out.append('  .amdhsa_group_segment_fixed_size 0')
    out.append('  .amdhsa_kernarg_size 48')
    out.append('  .amdhsa_user_sgpr_count 2')
    out.append('  .amdhsa_user_sgpr_kernarg_segment_ptr 1')
    out.append('  .amdhsa_system_sgpr_workgroup_id_x 1')
    out.append('.end_amdhsa_kernel')
open(sys.argv[1] if len(sys.argv)>1 else 'standalone__gqa_softmax__near_ridge.s','w').write('\n'.join(out)+'\n')
```

```python
import sys, os
out = []
KILL = os.environ.get('KILL','').split(',')
inloop=[False]
def e(s):
    if inloop[0]:
        if 'exp' in KILL and s.startswith('v_exp'): return
        if 'valu' in KILL and (s.startswith('v_exp') or s.startswith('v_fma') or s.startswith('v_add_f32') or s.startswith('v_cvt')): return
        if 'mfma' in KILL and s.startswith('v_mfma'): return
        if 'dma' in KILL and s.startswith('buffer_load'): return
        if 'bar' in KILL and s.startswith('s_barrier'): return
        if 'lds' in KILL and s.startswith('ds_read'): return
    out.append("    " + s)
def lab(s): out.append(s + ":")
HDR = open('standalone__gqa_softmax__near_ridge.s.ref').read().split('\n')
hdr_comments = [l for l in HDR if l.startswith(';') and '@launch' not in l]
LDS_BYTES = 163840
NAME = "standalone__gqa_softmax__near_ridge_kernel"
NAME2 = "gqa_combine_kernel"
INSTR = os.environ.get('INSTR','0')=='1'
GAP = float(os.environ.get('GAP','4'))
V_D = 1; V_KR = 5; V_TR = 9; V_MC = 17; V_L = 20; V_T = 23
VQ = 32; VK = 80; VS = 112; VO = 160
V_DBG=31
def q(qt, s): return VQ + (qt*4+s)*4
def k(kt, s): return VK + (kt*4+s)*4
def sreg(buf, qt, kt): return VS + buf*24 + qt*8 + kt*4
def vfr(dt): return VK + dt*4
def o(dt, qt): return VO + (dt*3+qt)*4
def r4(b): return f"v[{b}:{b+3}]"
def r2(b): return f"v[{b}:{b+1}]"
def stamp():
    if not INSTR: return
    e("s_memtime s[60:61]")
    e("s_waitcnt lgkmcnt(0)")
    e("s_mov_b32 m0, s62")
    e("s_add_u32 s62, s62, 1")
    e("s_nop 4")
    e(f"v_writelane_b32 v{V_DBG}, s60, m0")
VRING = 65536
QB = 114688
out += hdr_comments
out.append(f"; @launch grid=(256,1,1) block=(512,1,1) lds={LDS_BYTES}")
out.append('.amdgcn_target "amdgcn-amd-amdhsa--gfx950"')
out.append('.text')
out.append(f'.globl {NAME}')
out.append('.p2align 8')
out.append(f'.type {NAME},@function')
lab(NAME)
e("s_cmp_ge_u32 s2, 256")
e("s_cbranch_scc1 L_done")
if INSTR:
    e(f"v_mov_b32 v{V_DBG}, 0"); e("s_mov_b32 s62, 0")
stamp()
e("s_load_dwordx4 s[28:31], s[0:1], 0")
e("s_load_dwordx4 s[64:67], s[0:1], 16")
e("s_load_dwordx4 s[68:71], s[0:1], 32")
e("v_lshrrev_b32 v1, 6, v0")
e("v_and_b32 v0, 63, v0")
e("s_nop 0")
e("v_readfirstlane_b32 s27, v1")
e("s_and_b32 s3, s2, 7")
e("s_lshl_b32 s3, s3, 2")
e("s_lshr_b32 s36, s2, 6")
e("s_add_u32 s3, s3, s36")
e("s_lshr_b32 s36, s2, 5")
e("s_and_b32 s36, s36, 1")
e("s_lshr_b32 s37, s2, 3")
e("s_and_b32 s37, s37, 3")
e("s_and_b32 s52, s27, 3")
e("s_lshr_b32 s53, s27, 2")
e("s_lshr_b32 s56, s52, 1")
e("s_and_b32 s57, s52, 1")
e("s_lshl_b32 s54, s3, 1")
e("s_add_u32 s54, s54, s36")
e("s_lshl_b32 s55, s54, 2")
e("s_add_u32 s54, s55, s37")
e("s_add_u32 s55, s55, s52")
e("s_mul_i32 s38, s55, 12288")
e("s_lshl_b32 s39, s3, 19")
e("s_lshl_b32 s40, s37, 17")
e("s_add_u32 s39, s39, s40")
e("v_and_b32 v23, 15, v0")
e("v_lshrrev_b32 v24, 4, v0")
e("v_lshlrev_b32 v25, s56, v24")
e("v_xor_b32 v25, v23, v25")
e("v_lshlrev_b32 v25, 4, v25")
e(f"v_lshl_add_u32 v{V_D}, v24, 8, v25")
e("s_cmp_eq_u32 s56, 0")
e("s_cselect_b32 s58, 0x40, 0x80")
e("s_cselect_b32 s59, 0x80, 0")
e("s_cselect_b32 s63, 0x40, 0")
e("s_add_u32 s63, s63, 0x80")
e(f"v_xor_b32 v{V_D+1}, s58, v{V_D}")
e(f"v_xor_b32 v{V_D+2}, s59, v{V_D}")
e(f"v_xor_b32 v{V_D+3}, s63, v{V_D}")
e("s_lshl_b32 s41, s53, 15")
e("v_xor_b32 v25, v23, v24")
e("v_lshlrev_b32 v25, 4, v25")
e("v_lshl_add_u32 v25, v23, 8, v25")
e(f"v_add_u32 v{V_KR}, s41, v25")
for s in range(1,4):
    e(f"v_xor_b32 v{V_KR+s}, {s<<6}, v{V_KR}")
e("v_lshrrev_b32 v25, 2, v0")
e("v_and_b32 v26, 7, v25")
e("v_lshlrev_b32 v26, 5, v26")
e("v_lshl_add_u32 v26, v25, 8, v26")
e("v_and_b32 v25, 3, v0")
e("v_lshl_add_u32 v26, v25, 3, v26")
e("s_lshl_b32 s42, s53, 13")
e(f"s_add_u32 s42, s42, {VRING}")
e(f"v_add_u32 v{V_TR}, s42, v26")
e("s_lshl_b32 s44, s53, 7")
e(f"v_xor_b32 v{V_TR}, s44, v{V_TR}")
for dt in range(1,8):
    e(f"v_xor_b32 v{V_TR+dt}, {dt<<5}, v{V_TR}")
e("s_mov_b32 s20, 0x3e0293ee")
e("s_lshl_b32 s21, s53, 13")
e("s_lshl_b32 s44, s57, 12")
e("s_add_u32 s21, s21, s44")
e("s_cmp_eq_u32 s56, 0")
e("s_cselect_b32 s43, s41, s42")
e("s_add_u32 s43, s43, s44")
e("s_lshl_b32 s48, 0x2000, s56")
e("s_waitcnt lgkmcnt(0)")
e("s_mov_b32 s32, s64"); e("s_mov_b32 s33, s65"); e("s_mov_b32 s34, s70"); e("s_mov_b32 s35, s71")
e("s_cmp_eq_u32 s56, 0")
e("s_cselect_b32 s8, s30, s32")
e("s_cselect_b32 s9, s31, s33")
e("s_add_u32 s8, s8, s39"); e("s_addc_u32 s9, s9, 0"); e("s_mov_b32 s10, 0x20000"); e("s_mov_b32 s11, 0x00020000")
e("s_add_u32 s4, s28, s38"); e("s_addc_u32 s5, s29, 0"); e("s_mov_b32 s6, 12288"); e("s_mov_b32 s7, 0x00020000")
def dma4(m0line, so):
    e(m0line)
    e("s_nop 0")
    for i in range(4):
        e(f"buffer_load_dwordx4 v{V_D+i}, s[8:11], {so} offen offset:{i*1024} lds")
def qdma():
    e("v_xor_b32 v28, v23, v24")
    e("v_lshlrev_b32 v28, 4, v28")
    e("v_lshl_add_u32 v28, v24, 8, v28")
    e("s_lshl_b32 s44, s53, 7")
    e("v_xor_b32 v28, s44, v28")
    e("v_xor_b32 v27, 0x40, v28")
    e("s_lshl_b32 s44, s53, 11")
    e("s_mul_i32 s45, s52, 12288")
    e("s_add_u32 s45, s45, s44")
    e(f"s_add_u32 s45, s45, {QB}")
    for n in range(3):
        e(f"s_add_u32 m0, s45, {n*4096}")
        e("s_nop 0")
        e(f"buffer_load_dwordx4 v28, s[4:7], s44 offen lds")
        e(f"buffer_load_dwordx4 v27, s[4:7], s44 offen offset:1024 lds")
        e("s_add_u32 s44, s44, 4096")
e("s_cmp_lg_u32 s56, 0")
e("s_cbranch_scc1 L_vr")
dma4("s_mov_b32 m0, s43", "s21")
e("s_add_u32 s21, s21, 16384")
qdma()
for t in range(1,3):
    dma4(f"s_add_u32 m0, s43, {t*8192}", "s21")
    e("s_add_u32 s21, s21, 16384")
e("s_add_u32 s25, s43, 24576")
e("s_branch L_pj")
lab("L_vr")
qdma()
for t in range(2):
    dma4(f"s_add_u32 m0, s43, {t*16384}", "s21")
    e("s_add_u32 s21, s21, 16384")
e("s_add_u32 s25, s43, 32768")
lab("L_pj")
e("s_lshl_b32 s50, s48, 2")
e("s_add_u32 s50, s50, s43")
for qt in range(3):
    e(f"v_mov_b32 v{V_MC+qt}, 0xff800000")
    e(f"v_mov_b32 v{V_L+qt}, 0")
for i in range(96):
    e(f"v_mov_b32 v{VO+i}, 0")
for qt in range(3):
    for r in range(4):
        e(f"v_mov_b32 v{sreg(1,qt,0)+r}, 0")
stamp()
e("s_waitcnt vmcnt(8)")
e("s_barrier")
stamp()
e("v_xor_b32 v28, v23, v24")
e("v_lshlrev_b32 v28, 4, v28")
e("v_lshl_add_u32 v28, v23, 8, v28")
e("s_mul_i32 s45, s52, 12288")
e(f"s_add_u32 s45, s45, {QB}")
e("v_add_u32 v28, s45, v28")
for s_ in range(4):
    e(f"v_xor_b32 v27, {s_<<6}, v28")
    for qt in range(3):
        e(f"ds_read_b128 {r4(q(qt,s_))}, v27 offset:{qt*4096}")
for kt in range(2):
    for s in range(4):
        e(f"ds_read_b128 {r4(k(kt,s))}, v{V_KR+s} offset:{kt*4096}")
e("s_waitcnt lgkmcnt(0)")
for s in range(4):
    for kt in range(2):
        for qt in range(3):
            c = "0" if s == 0 else r4(sreg(0,qt,kt))
            e(f"v_mfma_f32_16x16x32_bf16 {r4(sreg(0,qt,kt))}, {r4(k(kt,s))}, {r4(q(qt,s))}, {c}")
e("s_mov_b32 s26, 0")
def mfma_pv(buf, dt, qt):
    return f"v_mfma_f32_16x16x32_bf16 {r4(o(dt,qt))}, {r4(vfr(dt))}, {r4(sreg(buf,qt,0))}, {r4(o(dt,qt))}"
def mfma_qk(buf, kt, s, qt):
    c = "0" if s == 0 else r4(sreg(buf,qt,kt))
    return f"v_mfma_f32_16x16x32_bf16 {r4(sreg(buf,qt,kt))}, {r4(k(kt,s))}, {r4(q(qt,s))}, {c}"
def kread(kt, kslot):
    return [f"ds_read_b128 {r4(k(kt,s))}, v{V_KR+s} offset:{kslot*8192+kt*4096}" for s in range(4)]
def vread(dts, vslot):
    r = []
    for dt in dts:
        r.append(f"ds_read_b64_tr_b16 {r2(vfr(dt))}, v{V_TR+dt} offset:{vslot*16384}")
        r.append(f"ds_read_b64_tr_b16 {r2(vfr(dt)+2)}, v{V_TR+dt} offset:{vslot*16384+4096}")
    return r
def dma_lines():
    r = ["s_mov_b32 m0, s25", "s_nop 0"]
    for i in range(4): r.append(f"buffer_load_dwordx4 v{V_D+i}, s[8:11], s21 offen offset:{i*1024} lds")
    r += ["s_add_u32 s21, s21, 16384", "s_add_u32 s25, s25, s48", "s_cmp_eq_u32 s25, s50", "s_cselect_b32 s25, s43, s25"]
    return r
def maxcheck(cur, tgt):
    for qt in range(3):
        b = sreg(cur,qt,0)
        e(f"v_max3_f32 v{V_T+qt}, v{b}, v{b+1}, v{b+2}")
        e(f"v_max3_f32 v{V_T+qt}, v{V_T+qt}, v{b+3}, v{b+4}")
        e(f"v_max3_f32 v{V_T+qt}, v{V_T+qt}, v{b+5}, v{b+6}")
        e(f"v_max_f32 v{V_T+qt}, v{V_T+qt}, v{b+7}")
        e(f"v_fma_f32 v{V_T+3+qt}, v{V_T+qt}, s20, -v{V_MC+qt}")
    e(f"v_max3_f32 v{V_T+3}, v{V_T+3}, v{V_T+4}, v{V_T+5}")
    e(f"v_cmp_lt_f32 vcc, 0x41000000, v{V_T+3}")
    e(f"s_cbranch_vccnz {tgt}")
def exp_valu(cur):
    va = []
    for qt in range(3):
        b = sreg(cur,qt,0)
        for j in range(8): va.append(f"v_fma_f32 v{b+j}, v{b+j}, s20, -v{V_MC+qt}")
        for j in range(8): va.append(f"v_exp_f32 v{b+j}, v{b+j}")
        for j in range(8): va.append(f"v_add_f32 v{V_L+qt}, v{V_L+qt}, v{b+j}")
        for j in range(4): va.append(f"v_cvt_pk_bf16_f32 v{b+j}, v{b+2*j}, v{b+2*j+1}")
    return va
def fast_body(it, last, name, slow):
    cur, nxt = it&1, 1-(it&1)
    kslot = (it+1)&3; vslot = it&3
    stamp()
    e("s_waitcnt vmcnt(4)")
    e("s_barrier")
    stamp()
    maxcheck(cur, slow)
    st = []
    st.append(('x', "s_waitcnt lgkmcnt(8)"))
    for dt in range(4):
        for qt in range(3): st.append(('m', mfma_pv(nxt, dt, qt)))
        if dt == 0 and not last:
            for l in dma_lines(): st.append(('x', l))
    if not last:
        for l in kread(0, kslot): st.append(('x', l))
        st.append(('x', "s_waitcnt lgkmcnt(4)"))
    else:
        st.append(('x', "s_waitcnt lgkmcnt(0)"))
    for dt in range(4,8):
        for qt in range(3): st.append(('m', mfma_pv(nxt, dt, qt)))
    if not last:
        for l in kread(1, kslot): st.append(('x', l))
        st.append(('x', "s_waitcnt lgkmcnt(4)"))
        for s_ in range(4):
            for qt in range(3): st.append(('m', mfma_qk(nxt, 0, s_, qt)))
        for l in vread(range(4), vslot): st.append(('x', l))
        st.append(('x', "s_waitcnt lgkmcnt(8)"))
        for s_ in range(4):
            for qt in range(3): st.append(('m', mfma_qk(nxt, 1, s_, qt)))
        for l in vread(range(4,8), vslot): st.append(('x', l))
    else:
        for l in vread(range(8), vslot): st.append(('x', l))
    va = exp_valu(cur)
    nm = sum(1 for t,_ in st if t=='m')
    per = len(va)/nm
    acc = 0.0; vi = 0
    for t, txt in st:
        e(txt)
        if t == 'm':
            acc += per
            while vi < len(va) and vi < acc - 1e-9:
                e(va[vi]); vi += 1
    while vi < len(va):
        e(va[vi]); vi += 1
def slow_body(it, last, name, ret):
    cur, nxt = it&1, 1-(it&1)
    kslot = (it+1)&3; vslot = it&3
    lab(name)
    e("s_waitcnt lgkmcnt(0)")
    for dt in range(8):
        for qt in range(3): e(mfma_pv(nxt, dt, qt))
    if not last:
        for l in dma_lines(): e(l)
        for kt in range(2):
            for l in kread(kt, kslot): e(l)
    e("s_nop 7")
    for qt in range(3):
        t = V_T+qt
        e(f"v_mov_b32 v{V_T+6}, v{t}")
        e("s_nop 1")
        e(f"v_permlane32_swap_b32 v{t}, v{V_T+6}")
        e("s_nop 1")
        e(f"v_max_f32 v{t}, v{t}, v{V_T+6}")
        e(f"v_mov_b32 v{V_T+6}, v{t}")
        e("s_nop 1")
        e(f"v_permlane16_swap_b32 v{t}, v{V_T+6}")
        e("s_nop 1")
        e(f"v_max_f32 v{t}, v{t}, v{V_T+6}")
        e(f"v_mul_f32 v{t}, s20, v{t}")
        e(f"v_max_f32 v{t}, v{t}, v{V_MC+qt}")
        e(f"v_sub_f32 v{V_T+6}, v{V_MC+qt}, v{t}")
        e(f"v_exp_f32 v{V_T+6}, v{V_T+6}")
        e(f"v_mov_b32 v{V_MC+qt}, v{t}")
        e(f"v_mul_f32 v{V_L+qt}, v{V_L+qt}, v{V_T+6}")
        for dt in range(8):
            for r in range(4):
                e(f"v_mul_f32 v{o(dt,qt)+r}, v{o(dt,qt)+r}, v{V_T+6}")
    e("s_waitcnt lgkmcnt(0)")
    if not last:
        for kt in range(2):
            for s_ in range(4):
                for qt in range(3): e(mfma_qk(nxt, kt, s_, qt))
    for l in vread(range(8), vslot): e(l)
    for l in exp_valu(cur): e(l)
    e(f"s_branch {ret}")
lab("L_loop")
inloop[0]=True
for it in range(3):
    fast_body(it, False, f"F{it}", f"L_slow{it}")
    lab(f"L_ret{it}")
e("s_cmp_lg_u32 s26, 0")
e("s_cbranch_scc1 L_last")
fast_body(3, False, "F3", "L_slow3")
lab("L_ret3")
e("s_mov_b32 s26, 4")
e("s_branch L_loop")
lab("L_last")
fast_body(3, True, "F3l", "L_slow3l")
lab("L_ret3l")
inloop[0]=False
e("s_waitcnt lgkmcnt(0)")
for dt in range(8):
    for qt in range(3): e(mfma_pv(1, dt, qt))
e("s_branch L_epi")
for it in range(4):
    slow_body(it, False, f"L_slow{it}", f"L_ret{it}")
slow_body(3, True, "L_slow3l", "L_ret3l")
lab("L_epi")
stamp()
e("s_waitcnt vmcnt(0) lgkmcnt(0)")
e("s_nop 7")
MLB = 131072
SB = VS
for qt in range(3):
    e(f"v_mov_b32 v23, v{V_L+qt}")
    e("s_nop 1")
    e(f"v_permlane32_swap_b32 v{V_L+qt}, v23")
    e("s_nop 1")
    e(f"v_add_f32 v{V_L+qt}, v{V_L+qt}, v23")
    e(f"v_mov_b32 v23, v{V_L+qt}")
    e("s_nop 1")
    e(f"v_permlane16_swap_b32 v{V_L+qt}, v23")
    e("s_nop 1")
    e(f"v_add_f32 v{V_L+qt}, v{V_L+qt}, v23")
e("v_and_b32 v23, 15, v0")
e("v_lshlrev_b32 v23, 2, v23")
e("s_mul_i32 s43, s27, 192")
e(f"s_add_u32 s43, s43, {MLB}")
e("v_add_u32 v24, s43, v23")
e("v_lshlrev_b32 v25, 4, v0")
e("s_xor_b32 s44, s27, 4")
e("s_mul_i32 s45, s44, 12288")
e("v_add_u32 v26, s45, v25")
e("s_mul_i32 s45, s27, 12288")
e("v_add_u32 v27, s45, v25")
e("s_mul_i32 s44, s44, 192")
e(f"s_add_u32 s44, s44, {MLB}")
e("v_add_u32 v28, s44, v23")
stamp()
e("s_barrier")
stamp()
for qt in range(3):
    e(f"ds_write_b32 v24, v{V_MC+qt} offset:{qt*64}")
    e(f"ds_write_b32 v24, v{V_L+qt} offset:{2048+qt*64}")
for a in range(4):
    for qt in range(3):
        e(f"ds_write_b128 v26, {r4(o(4+a,qt))} offset:{(a*3+qt)*1024}")
e("s_waitcnt lgkmcnt(0)")
e("s_barrier")
stamp()
for qt in range(3):
    e(f"ds_read_b32 v{SB+qt}, v28 offset:{qt*64}")
    e(f"ds_read_b32 v{SB+3+qt}, v28 offset:{2048+qt*64}")
for a in range(4):
    for qt in range(3):
        e(f"ds_read_b128 {r4(o(4+a,qt))}, v27 offset:{(a*3+qt)*1024}")
e("s_waitcnt lgkmcnt(0)")
for qt in range(3):
    e(f"v_max_f32 v30, v{SB+qt}, v{V_MC+qt}")
    e(f"v_sub_f32 v{SB+6+qt}, v{V_MC+qt}, v30")
    e(f"v_sub_f32 v{SB+qt}, v{SB+qt}, v30")
    e(f"v_mov_b32 v{V_MC+qt}, v30")
    e(f"v_exp_f32 v{SB+6+qt}, v{SB+6+qt}")
    e(f"v_exp_f32 v{SB+qt}, v{SB+qt}")
    e("s_nop 0")
    e(f"v_mul_f32 v{V_L+qt}, v{V_L+qt}, v{SB+6+qt}")
    e(f"v_fmac_f32 v{V_L+qt}, v{SB+3+qt}, v{SB+qt}")
    for a in range(4):
        for r in range(4):
            e(f"v_mul_f32 v{o(a,qt)+r}, v{o(a,qt)+r}, v{SB+6+qt}")
            e(f"v_fmac_f32 v{o(a,qt)+r}, v{o(4+a,qt)+r}, v{SB+qt}")
stamp()
e("s_mul_i32 s43, s54, 49152")
e("s_add_u32 s12, s34, s43"); e("s_addc_u32 s13, s35, 0"); e("s_mov_b32 s14, 49152"); e("s_mov_b32 s15, 0x00020000")
e("v_and_b32 v23, 15, v0")
e("v_lshlrev_b32 v25, 3, v0")
e("s_lshl_b32 s43, s52, 1")
e("s_add_u32 s43, s43, s53")
e("s_mul_i32 s43, s43, 6144")
e("s_add_u32 s44, s43, 4096")
for a in range(4):
    for qt in range(3):
        bi = a*3+qt
        b = o(a,qt)
        e(f"v_cvt_pk_bf16_f32 v{SB+12+2*bi}, v{b}, v{b+1}")
        e(f"v_cvt_pk_bf16_f32 v{SB+13+2*bi}, v{b+2}, v{b+3}")
        e(f"buffer_store_dwordx2 v[{SB+12+2*bi}:{SB+13+2*bi}], v25, s[12:15], {['s43','s44'][bi//8]} offen offset:{(bi%8)*512} sc1")
e("s_cmp_lg_u32 s53, 0")
e("s_cbranch_scc1 L_dump")
e("s_mul_i32 s43, s54, 1536")
e("s_add_u32 s43, s43, 0x2000000")
e("s_add_u32 s16, s34, s43"); e("s_addc_u32 s17, s35, 0"); e("s_mov_b32 s18, 1536"); e("s_mov_b32 s19, 0x00020000")
e("v_lshlrev_b32 v25, 3, v23")
e("s_mul_i32 s43, s52, 384")
e("v_add_u32 v25, s43, v25")
for qt in range(3):
    e(f"v_mov_b32 v{SB+2*qt}, v{V_MC+qt}")
    e(f"v_mov_b32 v{SB+2*qt+1}, v{V_L+qt}")
    e(f"buffer_store_dwordx2 v[{SB+2*qt}:{SB+2*qt+1}], v25, s[16:19], 0 offen offset:{qt*128} sc1")
lab("L_dump")
e("s_waitcnt vmcnt(0)")
e("s_barrier")
stamp()
e("s_cmp_lg_u32 s27, 0")
e("s_cbranch_scc1 L_noat")
e("s_lshr_b32 s43, s54, 2")
e("s_lshl_b32 s43, s43, 2")
e("s_mov_b32 s16, s68"); e("s_mov_b32 s17, s69"); e("s_mov_b32 s18, 256"); e("s_mov_b32 s19, 0x00020000")
e("v_mov_b32 v24, 1")
e("v_mov_b32 v25, s43")
e("s_mov_b64 s[44:45], exec")
e("s_mov_b64 exec, 1")
e("buffer_atomic_add v24, v25, s[16:19], 0 offen sc0 sc1")
e("s_waitcnt vmcnt(0)")
e(f"v_mov_b32 v25, {MLB}")
e("ds_write_b32 v25, v24")
e("s_waitcnt lgkmcnt(0)")
e("s_mov_b64 exec, s[44:45]")
lab("L_noat")
e("s_barrier")
e(f"v_mov_b32 v25, {MLB}")
e("ds_read_b32 v24, v25")
e("s_waitcnt lgkmcnt(0)")
e("v_readfirstlane_b32 s43, v24")
e("s_cmp_lg_u32 s43, 3")
e("s_cbranch_scc1 L_done")
stamp()
LB = 32
MB = 112
FB = 132
e("s_lshl_b32 s46, s52, 1")
e("s_add_u32 s46, s46, s53")
e("s_mul_i32 s46, s46, 6144")
e("v_lshlrev_b32 v25, 3, v0")
e("v_add_u32 v25, s46, v25")
e("v_add_u32 v26, 4096, v25")
e("v_lshlrev_b32 v27, 3, v23")
e("s_mul_i32 s46, s52, 384")
e("v_add_u32 v27, s46, v27")
e("s_mov_b32 s12, s34"); e("s_mov_b32 s13, s35"); e("s_mov_b32 s14, 0x3000000"); e("s_mov_b32 s15, 0x00020000")
for x in range(1,4):
    e(f"s_xor_b32 s43, s54, {x}")
    e("s_mul_i32 s44, s43, 1536")
    e("s_add_u32 s44, s44, 0x2000000")
    for qt in range(3):
        e(f"buffer_load_dwordx2 v[{MB+(x-1)*6+qt*2}:{MB+(x-1)*6+qt*2+1}], v27, s[12:15], s44 offen offset:{qt*128} sc1")
for x in range(1,4):
    e(f"s_xor_b32 s43, s54, {x}")
    e("s_mul_i32 s44, s43, 49152")
    for bi in range(12):
        b = LB + (x-1)*24 + bi*2
        e(f"buffer_load_dwordx2 v[{b}:{b+1}], v{25 if bi<8 else 26}, s[12:15], s44 offen offset:{(bi%8)*512} sc1")
e("s_waitcnt vmcnt(36)")
for qt in range(3):
    e(f"v_max3_f32 v30, v{MB+qt*2}, v{MB+6+qt*2}, v{MB+12+qt*2}")
    e(f"v_max_f32 v30, v30, v{V_MC+qt}")
    e(f"v_sub_f32 v{FB+qt}, v{V_MC+qt}, v30")
    for x in range(3): e(f"v_sub_f32 v{FB+3+x*3+qt}, v{MB+x*6+qt*2}, v30")
    e(f"v_exp_f32 v{FB+qt}, v{FB+qt}")
    for x in range(3): e(f"v_exp_f32 v{FB+3+x*3+qt}, v{FB+3+x*3+qt}")
    e("s_nop 0")
    e(f"v_mul_f32 v30, v{V_L+qt}, v{FB+qt}")
    for x in range(3): e(f"v_fmac_f32 v30, v{MB+x*6+qt*2+1}, v{FB+3+x*3+qt}")
    e(f"v_rcp_f32 v30, v30")
    e("s_nop 0")
    e(f"v_mul_f32 v{FB+qt}, v{FB+qt}, v30")
    for x in range(3): e(f"v_mul_f32 v{FB+3+x*3+qt}, v{FB+3+x*3+qt}, v30")
e("s_add_u32 s16, s66, s38"); e("s_addc_u32 s17, s67, 0"); e("s_mov_b32 s18, 12288"); e("s_mov_b32 s19, 0x00020000")
e("v_lshrrev_b32 v24, 4, v0")
e("v_lshlrev_b32 v28, 8, v23")
e("v_lshl_add_u32 v28, v24, 3, v28")
e("s_lshl_b32 s43, s53, 7")
e("v_add_u32 v28, s43, v28")
e("s_waitcnt vmcnt(0)")
for a in range(4):
    for qt in range(3):
        bi = a*3+qt
        ob = o(a,qt)
        for r in range(4): e(f"v_mul_f32 v{ob+r}, v{ob+r}, v{FB+qt}")
        for x in range(3):
            b = LB + x*24 + bi*2
            e(f"v_lshlrev_b32 v29, 16, v{b}")
            e(f"v_fmac_f32 v{ob}, v29, v{FB+3+x*3+qt}")
            e(f"v_and_b32 v29, 0xffff0000, v{b}")
            e(f"v_fmac_f32 v{ob+1}, v29, v{FB+3+x*3+qt}")
            e(f"v_lshlrev_b32 v29, 16, v{b+1}")
            e(f"v_fmac_f32 v{ob+2}, v29, v{FB+3+x*3+qt}")
            e(f"v_and_b32 v29, 0xffff0000, v{b+1}")
            e(f"v_fmac_f32 v{ob+3}, v29, v{FB+3+x*3+qt}")
        e(f"v_cvt_pk_bf16_f32 v{ob}, v{ob}, v{ob+1}")
        e(f"v_cvt_pk_bf16_f32 v{ob+1}, v{ob+2}, v{ob+3}")
        e(f"v_add_u32 v29, {qt*4096}, v28")
        e(f"buffer_store_dwordx2 v[{ob}:{ob+1}], v29, s[16:19], 0 offen offset:{a*32}")
stamp()
lab("L_done")
e("s_endpgm")
out.append('.section .rodata,"a"')
for nm, nv in ((NAME,256),):
    out.append('.p2align 6')
    out.append(f'.amdhsa_kernel {nm}')
    out.append(f'  .amdhsa_next_free_vgpr {nv}')
    out.append('  .amdhsa_next_free_sgpr 80')
    out.append(f'  .amdhsa_accum_offset {nv}')
    out.append('  .amdhsa_group_segment_fixed_size 0')
    out.append('  .amdhsa_kernarg_size 48')
    out.append('  .amdhsa_user_sgpr_count 2')
    out.append('  .amdhsa_user_sgpr_kernarg_segment_ptr 1')
    out.append('  .amdhsa_system_sgpr_workgroup_id_x 1')
    out.append('.end_amdhsa_kernel')
open(sys.argv[1] if len(sys.argv)>1 else 'standalone__gqa_softmax__near_ridge.s','w').write('\n'.join(out)+'\n')
```
